```python
import torch

def _softmax(x, axis=-1):
    return torch.softmax(x, dim=axis)
def _gelu(x):
    return torch.nn.functional.gelu(x, approximate="tanh")
def _silu(x):
    return torch.nn.functional.silu(x)
def _sigmoid(x):
    return torch.sigmoid(x)
def _layernorm(x, axis=-1, eps=1e-5):
    m = x.mean(dim=axis, keepdim=True)
    v = x.var(dim=axis, keepdim=True, unbiased=False)
    return (x - m) / torch.sqrt(v + eps)
def _scatter_add(tgt, idx, src, axis=0):
    return tgt.clone().index_add_(axis, idx, src)
def _segment_sum(src, seg, n):
    out = torch.zeros((n,) + src.shape[1:], dtype=src.dtype)
    return out.index_add_(0, seg, src)
def _pad(x, pw):
    flat = tuple(v for pair in reversed(pw) for v in pair)
    return torch.nn.functional.pad(x, flat)

kernel_name = 'recurrent_scan__sliding_block_cached__mixer_s_mlp__prompt'

def setup_inputs():

    _w = (lambda a: (lambda t: t.to(torch.bfloat16) if t.is_floating_point() else t)(torch.as_tensor(a)))
    def _A_setup():
        B, Sq, D = 1, 2048, 1024
        Hq, Hkv, Sk, Dh = 32, 4, 2048, 128
        assert Hq % Hkv == 0, (Hq, Hkv)
        return {
            "x": _w((lambda *s: torch.randn(*s, dtype=torch.bfloat16) * 0.05)(B, Sq, D)),
            "k_cache": _w((lambda *s: torch.randn(*s, dtype=torch.bfloat16) * 0.8)(B, Hkv, Sk, Dh)),
            "v_cache": _w((lambda *s: torch.randn(*s, dtype=torch.bfloat16) * 0.8)(B, Hkv, Sk, Dh)),
            "wq": _w((lambda *s: torch.randn(*s, dtype=torch.bfloat16) * 0.8)(D, Hq * Dh) * (D ** -0.5)),
            "wo": _w((lambda *s: torch.randn(*s, dtype=torch.bfloat16) * 0.8)(Hq * Dh, D) * ((Hq * Dh) ** -0.5)),
        }
    _A_in = _A_setup()

    def _B_setup():
        B, S, D, F = 1, 2048, 1024, 3584
        return {
            "x":  _w((lambda *s: torch.randn(*s, dtype=torch.bfloat16) * 0.05)(B, S, D)),
            "w1": _w((lambda *s: torch.randn(*s, dtype=torch.bfloat16) * 3.2)(D, D) * (D ** -0.5)),
            "w2": _w((lambda *s: torch.randn(*s, dtype=torch.bfloat16) * 3.2)(D, D) * (D ** -0.5)),
            "w3": _w((lambda *s: torch.randn(*s, dtype=torch.bfloat16) * 3.2)(D, F) * (D ** -0.5)),
            "w4": _w((lambda *s: torch.randn(*s, dtype=torch.bfloat16) * 1.6)(F, D) * (F ** -0.5)),
        }
    _B_in = _B_setup()

    return {
        "A_x": _A_in["x"],
        "A_k_cache": _A_in["k_cache"],
        "A_v_cache": _A_in["v_cache"],
        "A_wq": _A_in["wq"],
        "A_wo": _A_in["wo"],
        "B_x": _B_in["x"],
        "B_w1": _B_in["w1"],
        "B_w2": _B_in["w2"],
        "B_w3": _B_in["w3"],
        "B_w4": _B_in["w4"],
    }

def reference(A_x, A_k_cache, A_v_cache, A_wq, A_wo, B_x, B_w1, B_w2, B_w3, B_w4):
    def _A_ref(x, k_cache, v_cache, wq, wo):
        B, Sq, D = x.shape
        Hq, Dh = 32, 128
        Hkv, Sk = k_cache.shape[1], k_cache.shape[2]
        W = min(4096, max(256, Sk // 4))
        rep = Hq // Hkv
        q = (lambda x, *d: x.permute(*d))((x @ wq).reshape(B, Sq, Hq, Dh), 0, 2, 1, 3)
        k = (lambda x, n, axis: torch.repeat_interleave(x, n, dim=axis))(k_cache[:, :, Sk - W:, :], rep, axis=1)
        v = (lambda x, n, axis: torch.repeat_interleave(x, n, dim=axis))(v_cache[:, :, Sk - W:, :], rep, axis=1)
        scores = torch.einsum("bhqd,bhkd->bhqk", q, k) * (Dh ** -0.5)
        p = _softmax(scores, axis=-1)
        o = torch.einsum("bhqk,bhkd->bhqd", p, v)
        return (lambda x, *d: x.permute(*d))(o, 0, 2, 1, 3).reshape(B, Sq, Hq * Dh) @ wo

    def _B_ref(x, w1, w2, w3, w4):
        B, S, D = x.shape
        h = _gelu(_layernorm(x, axis=-1) @ w1)
        c = D // 4
        g0 = _pad(h[:, :, 0*c:1*c], ((0, 0), (1, 0), (0, 0)))[:, :S, :]
        g1 = _pad(h[:, :, 1*c:2*c], ((0, 0), (0, 1), (0, 0)))[:, 1:, :]
        g2 = _pad(h[:, :, 2*c:3*c], ((0, 0), (2, 0), (0, 0)))[:, :S, :]
        g3 = _pad(h[:, :, 3*c:   ], ((0, 0), (0, 2), (0, 0)))[:, 2:, :]
        hs = torch.concatenate([g0, g1, g2, g3], axis=-1) @ w2
        x1 = x + hs
        h2 = _gelu(_layernorm(x1, axis=-1) @ w3) @ w4
        return x1 + h2

    x = A_x
    xn = _layernorm(x, axis=-1)
    s = _A_ref(xn, A_k_cache, A_v_cache, A_wq, A_wo)
    g = _silu(_B_ref(xn, B_w1, B_w2, B_w3, B_w4))
    return x + s * g
```

```python
import re

TRANS = ('v_exp_f32','v_log_f32','v_rcp_f32','v_rsq_f32','v_sqrt_f32','v_sin_f32','v_cos_f32','v_rcp_iflag_f32')
_reg = re.compile(r'^(-|abs\()?([vas])(?:\[(\d+):(\d+)\]|(\d+))\)?$')

def regs(op):
    op = op.strip()
    if op == 'vcc': return {('s',106),('s',107)}
    if op == 'exec': return {('s',126),('s',127)}
    if op == 'm0': return {('s',124)}
    m = _reg.match(op)
    if not m: return set()
    k = m.group(2)
    if m.group(3) is not None: return {(k,i) for i in range(int(m.group(3)), int(m.group(4))+1)}
    return {(k,int(m.group(5)))}

def split_ops(rest):
    out=[];cur='';d=0
    for ch in rest:
        if ch=='[': d+=1
        if ch==']': d-=1
        if ch==',' and d==0: out.append(cur.strip()); cur=''
        else: cur+=ch
    if cur.strip(): out.append(cur.strip())
    return out

class I:
    __slots__=('txt','op','kind','w','r','A','B','C','states','passes')
    def __init__(s, txt):
        s.txt=txt; t=txt.split(';')[0].strip()
        s.w=set(); s.r=set(); s.A=s.B=s.C=set(); s.states=1; s.passes=0
        if not t or t.endswith(':') or t.startswith('.'):
            s.op=''; s.kind='none'; s.states=0; return
        p=t.split(None,1); s.op=op=p[0]
        rest=p[1] if len(p)>1 else ''
        ops=split_ops(rest)
        if ops:
            ops[-1]=ops[-1].split()[0] if not op.startswith('s_waitcnt') else ops[-1]
        R=lambda i: regs(ops[i]) if i<len(ops) else set()
        allr=lambda a: set().union(*[regs(o) for o in ops[a:]]) if len(ops)>a else set()
        if op.startswith('v_mfma'):
            s.kind='mfma'; s.w=R(0); s.A=R(1); s.B=R(2); s.C=R(3); s.r=s.A|s.B|s.C
            s.passes = 4 if '16x16x32' in op else 8
        elif op.startswith('ds_'):
            s.kind='ds'
            if op.startswith('ds_read') or op.startswith('ds_bpermute') or op.startswith('ds_swizzle'): s.w=R(0); s.r=allr(1)
            else: s.r=allr(0)
        elif op.startswith('buffer_') or op.startswith('global_'):
            s.kind='vmem'
            lds = ' lds' in t
            if 'load' in op and not lds: s.w=R(0); s.r=allr(1)
            else: s.r=allr(0)
            if lds: s.r|={('s',124)}; s.kind='dma'
            if 'atomic' in op and ' sc0' in t: s.w=R(0)
        elif op.startswith('v_'):
            s.kind='trans' if op.replace('_e32','').replace('_e64','') in TRANS else 'valu'
            s.w=R(0); s.r=allr(1)
            if op.startswith('v_cmp'):
                if op.startswith('v_cmpx'): s.w|=regs('exec')
            if '_co_' in op: s.w|=R(1); s.r=allr(2)
            if op.startswith('v_fmac') or op.startswith('v_pk_fmac') or op.startswith('v_dot2c') or 'dpp' in t or 'row_' in t: s.r|=R(0)
            if op.startswith('v_permlane'): s.kind='perm'; s.w=R(0)|R(1); s.r=R(0)|R(1)
            if op.startswith('v_cndmask') and len(ops)==3: s.r|=regs('vcc')
            if 'row_' in t or 'quad_perm' in t or 'wave_' in t: s.kind='dpp'
        elif op=='s_nop':
            s.kind='nop'; s.states=int(ops[0],0)+1
        elif op.startswith('s_'):
            s.kind='salu'
            if op.startswith('s_cmp') or op.startswith('s_cbranch') or op in('s_waitcnt','s_barrier','s_branch','s_endpgm','s_setprio','s_sleep'):
                s.r=allr(0) if op.startswith('s_cmp') else set()
            else:
                s.w=R(0); s.r=allr(1)
                if 'saveexec' in op: s.w|=regs('exec')
        else:
            raise ValueError('unknown instr '+txt)

def need(prev, cur):
    n=0
    isv=lambda k: k in('valu','trans','perm','dpp')
    pk,ck=prev.kind,cur.kind
    if pk=='mfma':
        t8={4:8,8:12}[prev.passes]; t6={4:6,8:10}[prev.passes]; t3={4:3,8:7}[prev.passes]
        if ck=='mfma':
            if prev.w & (cur.A|cur.B): n=max(n,t8)
            if prev.w & cur.C and not (prev.w==cur.C and prev.passes==cur.passes): n=max(n,t6)
            if prev.w & cur.w and not (prev.w & cur.C): n=max(n,t6)
        else:
            if prev.w & (cur.r|cur.w): n=max(n,t8)
            if isv(ck) and prev.C & cur.w: n=max(n,t3)
            if ck in('ds','vmem') and prev.C & cur.w: n=max(n,t3)
    if isv(pk):
        vw={x for x in prev.w if x[0]!='s'}; sw={x for x in prev.w if x[0]=='s'}
        if ck=='mfma' and vw & cur.r: n=max(n,2)
        if ck=='mfma' and sw & regs('exec'): n=max(n,4)
        if ck in('perm','dpp') and vw & cur.r: n=max(n,2)
        if ck in('perm','dpp') and sw & regs('exec'): n=max(n,5)
        if pk=='trans' and isv(ck) and vw & cur.r: n=max(n,1)
        if cur.op.startswith('v_readfirstlane') or cur.op.startswith('v_readlane'):
            if vw & cur.r: n=max(n,1)
            if sw & (cur.r|regs('exec')): n=max(n,4)
        if ck in('vmem','dma') and sw & cur.r: n=max(n,5)
        if isv(ck) and sw & cur.r: n=max(n,2)
        if ck=='salu' and sw & cur.r: n=max(n,1)
    if pk=='salu' and ('s',124) in prev.w and ck=='dma': n=max(n,1)
    if pk=='vmem' and 'store' in prev.op and ('x4' in prev.op or 'x3' in prev.op):
        if (prev.r & cur.w) and ck!='salu': n=max(n,2)
    return n

def fix(lines, report=None):
    out=[]; hist=[]
    for ln in lines:
        for t in ln.split('\n'):
            c=I(t)
            if c.kind=='none': out.append(t); continue
            req=0; d=0
            for p in reversed(hist):
                nn=need(p,c)
                if nn-d>req: req=nn-d; why=p.txt
                d+=p.states
                if d>=20: break
            if req>0:
                if report is not None: report.append((req,why,t))
                nop=I(f's_nop {req-1}'); out.append(nop.txt); hist.append(nop)
            out.append(t); hist.append(c)
            if len(hist)>40: hist=hist[-24:]
    return out

def vr(b,n=1,k='v'):
    return f'{k}{b}' if n==1 else f'{k}[{b}:{b+n-1}]'

def kernel_header(name):
    return [f'.globl {name}','.p2align 8',f'.type {name},@function',f'{name}:']

def kernel_desc(name, vgpr=512, accum=256, sgpr=96):
    return [f'.amdhsa_kernel {name}',
      f'  .amdhsa_next_free_vgpr {vgpr}', f'  .amdhsa_next_free_sgpr {sgpr}', f'  .amdhsa_accum_offset {accum}',
      '  .amdhsa_group_segment_fixed_size 0','  .amdhsa_kernarg_size 104','  .amdhsa_user_sgpr_count 2',
      '  .amdhsa_user_sgpr_kernarg_segment_ptr 1','  .amdhsa_system_sgpr_workgroup_id_x 1',
      '.end_amdhsa_kernel']
```

```python
import sys, re
from common import *
MACROS=[]
def _m():
    o=[]
    for x in 'av':
        for y in 'av':
            for z in 'av':
                o+=[f'.macro M{x}{y}{z} d,a,b', f'v_mfma_f32_16x16x32_bf16 {x}[\\d:\\d+3], {y}[\\a:\\a+3], {z}[\\b:\\b+3], {x}[\\d:\\d+3]','.endm',
                    f'.macro Z{x}{y}{z} d,a,b', f'v_mfma_f32_16x16x32_bf16 {x}[\\d:\\d+3], {y}[\\a:\\a+3], {z}[\\b:\\b+3], 0','.endm',
                    f'.macro C{x}{y}{z} d,a,b,c', f'v_mfma_f32_16x16x32_bf16 {x}[\\d:\\d+3], {y}[\\a:\\a+3], {z}[\\b:\\b+3], {x}[\\c:\\c+3]','.endm']
    o+=['.macro TR r,b,o','ds_read_b64_tr_b16 v[\\r:\\r+1], v\\b offset:\\o','.endm',
        '.macro RQ r,b,o','ds_read_b128 v[\\r:\\r+3], v\\b offset:\\o','.endm',
        '.macro WL n','s_waitcnt lgkmcnt(\\n)','.endm',
        '.macro EX r','v_exp_f32 v\\r, v\\r','.endm','.macro RC r','v_rcp_f32 v\\r, v\\r','.endm',
        '.macro CV d,a,b','v_cvt_pk_bf16_f32 v\\d, v\\a, v\\b','.endm',
        '.macro AR d,a','v_accvgpr_read_b32 v\\d, a\\a','.endm','.macro AW d,a','v_accvgpr_write_b32 a\\d, v\\a','.endm',
        '.macro PM d,a,b','v_pk_mul_f32 v[\\d:\\d+1], v[\\a:\\a+1], v[\\b:\\b+1]','.endm',
        '.macro PA d,a,b','v_pk_add_f32 v[\\d:\\d+1], v[\\a:\\a+1], v[\\b:\\b+1]','.endm',
        '.macro PF d,a,b,c','v_pk_fma_f32 v[\\d:\\d+1], v[\\a:\\a+1], v[\\b:\\b+1], v[\\c:\\c+1]','.endm',
        '.macro DM v,s,f,o','buffer_load_dwordx4 v\\v, s[\\s:\\s+3], s\\f offen offset:\\o lds','.endm',
        '.macro LV d,v,s,f,o','buffer_load_dwordx4 v[\\d:\\d+3], v\\v, s[\\s:\\s+3], s\\f offen offset:\\o','.endm',
        '.macro LA d,v,s,f,o','buffer_load_dwordx4 a[\\d:\\d+3], v\\v, s[\\s:\\s+3], s\\f offen offset:\\o','.endm']
    return o
R=r'\[(\d+):\d+\]'
RULES=[(re.compile(p+'$'),f) for p,f in [
 (rf'v_mfma_f32_16x16x32_bf16 ([av]){R}, ([av]){R}, ([av]){R}, 0', lambda m: f'Z{m[1]}{m[3]}{m[5]} {m[2]},{m[4]},{m[6]}'),
 (rf'v_mfma_f32_16x16x32_bf16 ([av]){R}, ([av]){R}, ([av]){R}, ([av]){R}', lambda m: f'M{m[1]}{m[3]}{m[5]} {m[2]},{m[4]},{m[6]}' if m[8]==m[2] else f'C{m[1]}{m[3]}{m[5]} {m[2]},{m[4]},{m[6]},{m[8]}'),
 (rf'ds_read_b64_tr_b16 v{R}, v(\d+) offset:(\d+)', lambda m: f'TR {m[1]},{m[2]},{m[3]}'),
 (rf'ds_read_b128 v{R}, v(\d+) offset:(\d+)', lambda m: f'RQ {m[1]},{m[2]},{m[3]}'),
 (r's_waitcnt lgkmcnt\((\d+)\)', lambda m: f'WL {m[1]}'),
 (r'v_exp_f32 v(\d+), v\1', lambda m: f'EX {m[1]}'), (r'v_rcp_f32 v(\d+), v\1', lambda m: f'RC {m[1]}'),
 (r'v_cvt_pk_bf16_f32 v(\d+), v(\d+), v(\d+)', lambda m: f'CV {m[1]},{m[2]},{m[3]}'),
 (r'v_accvgpr_read_b32 v(\d+), a(\d+)', lambda m: f'AR {m[1]},{m[2]}'), (r'v_accvgpr_write_b32 a(\d+), v(\d+)', lambda m: f'AW {m[1]},{m[2]}'),
 (rf'v_pk_mul_f32 v{R}, v{R}, v{R}', lambda m: f'PM {m[1]},{m[2]},{m[3]}'), (rf'v_pk_add_f32 v{R}, v{R}, v{R}', lambda m: f'PA {m[1]},{m[2]},{m[3]}'),
 (rf'v_pk_fma_f32 v{R}, v{R}, v{R}, v{R}', lambda m: f'PF {m[1]},{m[2]},{m[3]},{m[4]}'),
 (rf'buffer_load_dwordx4 v(\d+), s{R}, s(\d+) offen offset:(\d+) lds', lambda m: f'DM {m[1]},{m[2]},{m[3]},{m[4]}'),
 (rf'buffer_load_dwordx4 v{R}, v(\d+), s{R}, s(\d+) offen offset:(\d+)', lambda m: f'LV {m[1]},{m[2]},{m[3]},{m[4]},{m[5]}'),
 (rf'buffer_load_dwordx4 a{R}, v(\d+), s{R}, s(\d+) offen offset:(\d+)', lambda m: f'LA {m[1]},{m[2]},{m[3]},{m[4]},{m[5]}'),
]]
def squeeze(l):
    for p,f in RULES:
        m=p.match(l)
        if m: return f(m)
    return l
def build(kernels, launches, path, hdr='', compress=True):
    o=[]
    if hdr: o.append(hdr.rstrip('\n'))
    for n in launches:
        g,b,l=kernels[n][2]; o.append(f'; @launch kernel={n} grid=({g},1,1) block=({b},1,1) lds={l}')
    o+=['.amdgcn_target "amdgcn-amd-amdhsa--gfx950"']
    if compress: o+=_m()
    o+=['.text']
    for n,k in kernels.items(): o+=[squeeze(x) for x in k[0]] if compress else k[0]
    o+=['.section .rodata,"a"']
    for n,k in kernels.items(): o+=['.p2align 6']+k[1]
    open(path,'w').write('\n'.join(o)+'\n')
    return len(o)
def header():
    ref=open('recurrent_scan__sliding_block_cached__mixer_s_mlp__prompt.s.ref').read().split('\n')
    return '\n'.join(l for l in ref if l.startswith(';') and '@launch' not in l and 'Override' not in l and 'grid=ceil' not in l)
FINAL='recurrent_scan__sliding_block_cached__mixer_s_mlp__prompt.s'
```

```python
from asmlib import *
from gemm import *
import struct
def f2u(x): return struct.unpack('<I',struct.pack('<f',x))[0]
def fhex(x): return hex(f2u(x))

MB=1<<20
WS_XN=0; WS_XN2=4*MB; WS_H=8*MB; WS_X1=12*MB; WS_G=16*MB
WS_ST=20*MB
WS_CS=20*MB+256*1024
WS_FL=20*MB+512*1024
WS_H3=24*MB; WS_O=40*MB
ARG=dict(x=0,k=8,v=16,wq=24,wo=32,bx=40,w1=48,w2=56,w3=64,w4=72,out=80,dbg=88,ws=96)
LOG2E=1.4426950408889634
GC0=-2*LOG2E*0.7978845608028654; GC1=GC0*0.044715

def srd(d, p, off, size):
    o=[]
    if off: o+=[f's_add_u32 s{d}, s{p}, {off}', f's_addc_u32 s{d+1}, s{p+1}, 0']
    else: o+=[f's_mov_b32 s{d}, s{p}', f's_mov_b32 s{d+1}, s{p+1}']
    return o+[f's_mov_b32 s{d+2}, {size}', f's_mov_b32 s{d+3}, 0x20000']

def lane_setup(sW='s3'):
    return ['v_and_b32 v1, 63, v0','v_lshrrev_b32 v2, 6, v0','s_nop 0',f'v_readfirstlane_b32 {sW}, v2']

def tr_bases(vA, vB, t0=2):
    o=[f'v_lshrrev_b32 v{t0}, 2, v1', f'v_and_b32 v{t0+1}, 7, v{t0}', f'v_lshlrev_b32 v{t0}, 8, v{t0}',
       f'v_and_b32 v{t0+2}, 3, v1', f'v_lshl_add_u32 v{t0}, v{t0+2}, 3, v{t0}']
    for i in range(8):
        o+=[f'v_xor_b32 v{t0+2}, {i}, v{t0+1}', f'v_lshl_add_u32 v{vA+i}, v{t0+2}, 5, v{t0}']
        if vB is not None: o+=[f'v_add_u32 v{vB+i}, 0x10000, v{vA+i}']
    return o

def wdma_offsets(vD, ldw, sW='s3', t0=2):
    o=[f'v_lshrrev_b32 v{t0}, 4, v1', f's_lshl_b32 s36, {sW}, 4', f'v_add_u32 v{t0+1}, s36, v{t0}',
       f'v_mul_u32_u24 v{t0+1}, {ldw}, v{t0+1}', f'v_and_b32 v{t0+2}, 15, v1']
    for q in range(4):
        o+=[f'v_add_u32 v{t0+3}, {4*(q&1)}, v{t0}', f'v_lshlrev_b32 v{t0+3}, 1, v{t0+3}', f'v_xor_b32 v{t0+3}, v{t0+3}, v{t0+2}',
            f'v_lshl_add_u32 v{t0+3}, v{t0+3}, 4, v{t0+1}', f'v_add_u32 v{vD+q}, {4*q*ldw-1024*q}, v{t0+3}']
    return o

def gelu_pk(xs, t, cA, cB, cOne):
    o=[]; P=list(enumerate(xs))
    for k,x in P: o.append(f'v_pk_mul_f32 {vr(t+2*k,2)}, {vr(x,2)}, {vr(x,2)}')
    for k,x in P: o.append(f'v_pk_fma_f32 {vr(t+2*k,2)}, {vr(t+2*k,2)}, {vr(cB,2)}, {vr(cA,2)}')
    for k,x in P: o.append(f'v_pk_mul_f32 {vr(t+2*k,2)}, {vr(t+2*k,2)}, {vr(x,2)}')
    for k,x in P: o+=[f'v_exp_f32 v{t+2*k}, v{t+2*k}', f'v_exp_f32 v{t+2*k+1}, v{t+2*k+1}']
    for k,x in P: o.append(f'v_pk_add_f32 {vr(t+2*k,2)}, {vr(t+2*k,2)}, {vr(cOne,2)}')
    for k,x in P: o+=[f'v_rcp_f32 v{t+2*k}, v{t+2*k}', f'v_rcp_f32 v{t+2*k+1}, v{t+2*k+1}']
    for k,x in P: o.append(f'v_pk_mul_f32 {vr(x,2)}, {vr(x,2)}, {vr(t+2*k,2)}')
    return o

def vconst2(v, val):
    return [f'v_mov_b32 v{v}, {fhex(val)}', f'v_mov_b32 v{v+1}, {fhex(val)}']

def xrow_sum(v, t):
    return [f'v_mov_b32 v{t}, v{v}', f'v_permlane16_swap_b32 v{t}, v{v}', f'v_add_f32 v{v}, v{v}, v{t}',
            f'v_mov_b32 v{t}, v{v}', f'v_permlane32_swap_b32 v{t}, v{v}', f'v_add_f32 v{v}, v{v}, v{t}']

def finish_gemm(g, U, label, scnt):
    head,bodies,tail=g.segments()
    L=head+[';;B']
    for b in bodies: L+=b+[';;B']
    L+=tail
    rep=[]
    L=fix(L,rep)
    if rep: print(f'[{label}] hazard nops in main loop:',len(rep), rep[:3])
    parts=[[]]
    for x in L:
        if x==';;B': parts.append([])
        else: parts[-1].append(x)
    return parts[0]+roll(parts[1:-1],U,label,scnt)+parts[-1]
```

```python
from asmlib import *

class VM:
    def __init__(s): s.q=[]
    def issue(s, tag): s.q.append(tag)
    def wait(s, tags):
        last=-1
        for k,t in enumerate(s.q):
            if t in tags: last=k
        n=len(s.q)-1-last
        s.q=s.q[last+1:]
        assert n<=63, n
        return n

def spread(gaps, extras, skip=lambda g: False):
    idx=[g for g in range(len(gaps)) if not skip(g)]
    n=len(extras)
    for k,e in enumerate(extras):
        g=idx[min(len(idx)-1,(k*len(idx))//n)]
        gaps[g].append(e)

class Gemm:
    def __init__(s, NT, NH, KT, NS, PA, acc, xbuf, wslot, nslot, vA, vB, vm,
                 wdma, xload, body0=(), zero_init=True):
        s.__dict__.update(locals()); s.NF=8*NH
    def lds_tile(s, i, t):
        if s.NH==2: return ((s.vA if t<8 else s.vB)+(t&7), (i%s.NS)*16384)
        sl=i%s.NS
        return ((s.vA if sl<4 else s.vB)+t, (sl&3)*16384)
    def reads(s, u):
        i,t=divmod(u,s.NF); b,imm=s.lds_tile(i,t); w=s.wslot+(u%s.nslot)*8
        return [f'ds_read_b64_tr_b16 {vr(w+ks*4+hf*2,2)}, v{b} offset:{imm+(32*ks+16*hf)*256}' for ks in range(2) for hf in range(2)]
    def mfmas(s, u):
        i,t=divmod(u,s.NF); w=s.wslot+(u%s.nslot)*8; out=[]
        for j in range(s.NT):
            for ks in range(2):
                c = '0' if (s.zero_init and i==0 and ks==0) else s.acc(t,j)
                out.append(f'v_mfma_f32_16x16x32_bf16 {s.acc(t,j)}, {vr(w+ks*4,4)}, {s.xbuf(i,j,ks)}, {c}')
        return out
    def loads(s, m):
        return s.wdma(m)+s.xload(m)
    def emit_loads(s, lst):
        out=[]
        for txt,tag in lst:
            if tag: s.vm.issue(tag)
            out.append(txt)
        return out
    def prologue_loads(s):
        out=[]
        for m in range(s.NS-1): out+=s.emit_loads(s.loads(m))
        return out
    def segments(s):
        NF,PA,KT=s.NF,s.PA,s.KT; U=KT*NF
        def tiles(u0,u1,extras):
            gaps=[];ms=[];last=[]
            for u in range(u0,u1):
                m=s.mfmas(u); g=[[] for _ in m]
                if u+PA<U:
                    for k,r in enumerate(s.reads(u+PA)): g[(k*len(m))//4].append((r,None))
                if u+1<U:
                    nxt=min(U,u+1+PA)-(u+2)
                    g[-1].append((f's_waitcnt lgkmcnt({4*nxt})',None))
                ms+=m; gaps+=g; last+= [False]*(len(m)-1)+[True]
            full=lambda g: last[g] or (len(ms)>=8*(u1-u0) and len(gaps[g])>0)
            if extras: spread(gaps,extras,full)
            out=[]
            for m,g in zip(ms,gaps):
                out.append(m); out+=s.emit_loads(g)
            return out
        head=[f's_waitcnt vmcnt({s.vm.wait({("W",0),("X",0)})})','s_barrier']
        for u in range(PA): head+=s.reads(u)
        head.append(f's_waitcnt lgkmcnt({4*(PA-1)})')
        head+=tiles(0,NF-PA,s.loads(s.NS-1))
        bodies=[]
        for i in range(KT-1):
            b=[f's_waitcnt vmcnt({s.vm.wait({("W",i+1),("X",i+1)})})','s_barrier']
            ex = s.loads(i-1+s.NS) if i>=1 else s.body0
            b+=tiles(i*NF+NF-PA,(i+1)*NF+NF-PA,ex)
            bodies.append(b)
        tail=tiles(U-PA,U,[])
        return head,bodies,tail

def roll(bodies, U, label, scnt):
    n=len(bodies); txt=['\n'.join(b) for b in bodies]
    best=(0,0)
    for a in range(n):
        e=a
        while e+U<n and txt[e]==txt[e+U]: e+=1
        g=(e-a+U)//U if e>a else 0
        if a+g*U<=n and g>best[1]: best=(a,g)
    a,g=best
    out=[]
    if g<2:
        for b in bodies: out+=b
        return out
    for b in bodies[:a]: out+=b
    out+=[f's_mov_b32 {scnt}, {g}', f'{label}:']
    grp=[]
    for b in bodies[a:a+U]: grp+=b
    k=len(grp)-1
    while not grp[k].startswith('v_mfma'): k-=1
    grp=grp[:k]+[f's_sub_u32 {scnt}, {scnt}, 1']+grp[k:]+[f's_cmp_lg_u32 {scnt}, 0',f's_cbranch_scc1 {label}']
    out+=grp
    for b in bodies[a+g*U:]: out+=b
    return out
```

```python
from common import *
vA,vB,vD,vX,WSL,ACC=64,72,80,84,96,160
acc=lambda t,j: vr(ACC+(t*2+j)*4,4)
accr=lambda t,j: ACC+(t*2+j)*4
xbuf=lambda i,j,ks: vr((i%8)*16+j*8+ks*4,4,'a')

def tile_ids():
    return ['s_and_b32 s36, s35, 7','s_lshr_b32 s37, s35, 3',
            's_lshr_b32 s33, s36, 1','s_lshl_b32 s33, s33, 2','s_lshr_b32 s38, s37, 2','s_add_u32 s33, s33, s38',
            's_and_b32 s34, s36, 1','s_lshl_b32 s34, s34, 2','s_and_b32 s38, s37, 3','s_add_u32 s34, s34, s38']

def g128_main(L, role, KB, KT, sc1x=False, PA=4, pre=None, shift=False):
    o=[]; A=o.append; X=o.extend
    vm=VM()
    X(wdma_offsets(vD,2048))
    A('s_lshl_b32 s25, s34, 8'); A('s_lshl_b32 s27, s3, 12')
    A('s_lshl_b32 s39, s33, 3'); A('s_lshl_b32 s36, s3, 1'); A('s_add_u32 s39, s39, s36')
    if not shift:
        A(f's_mul_i32 s24, s39, {KB*1024}')
        A(f'v_lshlrev_b32 v{vX}, 4, v1'); A(f'v_add_u32 v{vX+1}, {KB*1024}, v{vX}')
    else:
        A('s_mov_b32 s24, 0')
        A('v_and_b32 v2, 15, v1'); A('s_lshl_b32 s36, s39, 4'); A('v_add_u32 v2, s36, v2')
        A('v_and_b32 v3, 48, v1')
        for gi,dl in enumerate((-1,1,-2,2)):
            for j in range(2):
                d=vX+gi*2+j
                A(f'v_add_u32 v4, {16*j+dl}, v2' if 16*j+dl>=0 else f'v_subrev_u32 v4, {-(16*j+dl)}, v2')
                A('v_and_b32 v5, 15, v4'); A('v_add_u32 v5, v5, v3'); A('v_lshlrev_b32 v5, 4, v5')
                A('v_lshrrev_b32 v6, 4, v4'); A('v_min_u32 v6, 0x1000, v6')
                A(f'v_lshl_add_u32 v{d}, v6, 15, v5')
    sc=' sc1' if sc1x else ''
    def wdma(m):
        if m>=KT: return []
        sl=m%8
        r=[(f's_add_u32 m0, s27, {sl*16384}',None)]
        r+=[(f'buffer_load_dwordx4 v{vD+q}, s[12:15], s25 offen offset:{1024*q} lds',('W',m)) for q in range(4)]
        return r+[(f's_add_u32 s25, s25, {64*2048}',None)]
    def xload(m):
        if m>=KT: return []
        vx=lambda j: vX+((m//4)*2+j if shift else j)
        r=[(f'buffer_load_dwordx4 {xbuf(m,j,ks)}, v{vx(j)}, s[8:11], s24 offen offset:{1024*ks}{sc}',('X',m)) for j in range(2) for ks in range(2)]
        return r+[('s_add_u32 s24, s24, 2048',None)]
    ps,pl = pre() if pre else ([],[])
    g=Gemm(2,1,KT,8,PA,acc,xbuf,WSL,8,vA,vB,vm,wdma,xload,body0=pl)
    X(g.prologue_loads())
    X(ps)
    X(tr_bases(vA,vB))
    o=fix(o)
    o+=finish_gemm(g,8,L+'_loop','s32')
    return o, vm

def unpack8(src, dst):
    o=[]
    for k in range(4): o+=[f'v_lshlrev_b32 v{dst+2*k}, 16, v{src+k}', f'v_and_b32 v{dst+2*k+1}, 0xffff0000, v{src+k}']
    return o

def out_addr():
    return ['s_lshl_b32 s24, s39, 15','s_lshl_b32 s36, s34, 12','s_add_u32 s24, s24, s36',
            'v_lshlrev_b32 v92, 4, v1','v_add_u32 v93, 0x8000, v92']

def b1_body(L, sc1=False):
    o,vm=g128_main(L,'b1',32,16)
    e=out_addr()+vconst2(2,GC0)+vconst2(4,GC1)+vconst2(6,1.0)+['s_nop 7']
    sc=' sc1' if sc1 else ''
    for T in range(4):
        for j in range(2):
            xs=[accr(2*T,j),accr(2*T,j)+2,accr(2*T+1,j),accr(2*T+1,j)+2]
            e+=gelu_pk(xs,8,2,4,6)
            d=16+4*((T*2+j)&1)
            e+=[f'v_cvt_pk_bf16_f32 v{d+k}, v{x}, v{x+1}' for k,x in enumerate(xs)]
            e.append(f'buffer_store_dwordx4 {vr(d,4)}, v{92+j}, s[16:19], s24 offen offset:{1024*T}{sc}')
    return o+fix(['s_nop 7']+e)

def res_pre(srdn, sc=''):
    def pre():
        r=['s_lshl_b32 s40, s39, 15','s_lshl_b32 s36, s34, 12','s_add_u32 s40, s40, s36',
           'v_lshlrev_b32 v92, 4, v1','v_add_u32 v93, 0x8000, v92']
        l=[(f'buffer_load_dwordx4 {vr(8+(T*2+j)*4,4)}, v{92+j}, s[{srdn}:{srdn+3}], s40 offen offset:{1024*T}{sc}',('R',0)) for T in range(4) for j in range(2)]
        return r,l
    return pre

def b2_body(L, sc1x=False, sc1=False):
    o,vm=g128_main(L,'b2',32,16,sc1x=sc1x,pre=res_pre(20),shift=True)
    sc=' sc1' if sc1 else ''
    e=['s_nop 7','s_waitcnt vmcnt(0)']
    for j in range(2):
        for T in range(4):
            e+=unpack8(8+(T*2+j)*4,40)
            xs=[accr(2*T,j),accr(2*T,j)+2,accr(2*T+1,j),accr(2*T+1,j)+2]
            e+=[f'v_pk_add_f32 {vr(x,2)}, {vr(x,2)}, {vr(40+2*k,2)}' for k,x in enumerate(xs)]
            d=48+4*(T&1)
            e+=[f'v_cvt_pk_bf16_f32 v{d+k}, v{x}, v{x+1}' for k,x in enumerate(xs)]
            e.append(f'buffer_store_dwordx4 {vr(d,4)}, v{92+j}, s[16:19], s40 offen offset:{1024*T}{sc}')
        P=[accr(t,j)+h for t in range(8) for h in (0,2)]
        e.append(f'v_pk_add_f32 v[56:57], {vr(P[0],2)}, {vr(P[1],2)}'); e.append(f'v_pk_add_f32 v[58:59], {vr(P[2],2)}, {vr(P[3],2)}')
        for k in range(4,16): e.append(f'v_pk_add_f32 {vr(56+2*(k&1),2)}, {vr(56+2*(k&1),2)}, {vr(P[k],2)}')
        e+=['v_pk_add_f32 v[56:57], v[56:57], v[58:59]','v_add_f32 v56, v56, v57']+xrow_sum(56,58)
        e+=[f'v_mul_f32 v56, {fhex(1/128)}, v56','v_mov_b32 v57, v56']
        e+=[f'v_pk_add_f32 {vr(p,2)}, {vr(p,2)}, v[56:57] neg_lo:[0,1] neg_hi:[0,1]' for p in P]
        e.append(f'v_pk_mul_f32 v[58:59], {vr(P[0],2)}, {vr(P[0],2)}'); e.append(f'v_pk_mul_f32 v[60:61], {vr(P[1],2)}, {vr(P[1],2)}')
        for k in range(2,16): e.append(f'v_pk_fma_f32 {vr(58+2*(k&1),2)}, {vr(P[k],2)}, {vr(P[k],2)}, {vr(58+2*(k&1),2)}')
        e+=['v_pk_add_f32 v[58:59], v[58:59], v[60:61]','v_add_f32 v57, v58, v59']+xrow_sum(57,58)
        e+=['v_and_b32 v58, 15, v1',f'v_add_u32 v58, {16*j}, v58','v_lshlrev_b32 v58, 6, v58',
            's_lshl_b32 s36, s39, 10','s_lshl_b32 s37, s34, 3','s_add_u32 s36, s36, s37',
            f'buffer_store_dwordx2 v[56:57], v58, s[28:31], s36 offen{sc}']
    return o+fix(e)

def b4_body(L, sc1x=False):
    o,vm=g128_main(L,'b4',112,56,sc1x=sc1x,pre=res_pre(20,' sc1' if sc1x else ''))
    e=['s_nop 7','s_waitcnt vmcnt(0)']+vconst2(2,-LOG2E)+vconst2(6,1.0)
    for T in range(4):
        for j in range(2):
            e+=unpack8(8+(T*2+j)*4,40)
            xs=[accr(2*T,j),accr(2*T,j)+2,accr(2*T+1,j),accr(2*T+1,j)+2]; P=list(enumerate(xs))
            e+=[f'v_pk_add_f32 {vr(x,2)}, {vr(x,2)}, {vr(40+2*k,2)}' for k,x in P]
            e+=[f'v_pk_mul_f32 {vr(40+2*k,2)}, {vr(x,2)}, v[2:3]' for k,x in P]
            e+=[f'v_exp_f32 v{40+k}, v{40+k}' for k in range(8)]
            e+=[f'v_pk_add_f32 {vr(40+2*k,2)}, {vr(40+2*k,2)}, v[6:7]' for k,x in P]
            e+=[f'v_rcp_f32 v{40+k}, v{40+k}' for k in range(8)]
            e+=[f'v_pk_mul_f32 {vr(x,2)}, {vr(x,2)}, {vr(40+2*k,2)}' for k,x in P]
            d=48+4*((T*2+j)&1)
            e+=[f'v_cvt_pk_bf16_f32 v{d+k}, v{x}, v{x+1}' for k,x in P]
            e.append(f'buffer_store_dwordx4 {vr(d,4)}, v{92+j}, s[16:19], s40 offen offset:{1024*T} sc1')
    e+=['s_waitcnt vmcnt(0)','s_barrier','s_cmp_lg_u32 s3, 0',f's_cbranch_scc1 {L}_done',
        's_lshl_b32 s36, s33, 3','s_add_u32 s36, s36, s34','s_lshl_b32 s36, s36, 7',
        's_mov_b64 exec, 1','v_mov_b32 v2, 0','v_mov_b32 v3, 1','buffer_store_dword v3, v2, s[28:31], s36 offen sc1',f'{L}_done:']
    return o+fix(e)

def a2_body(L, sc1x=False):
    def pre():
        l=[]
        r=['v_lshrrev_b32 v2, 4, v1','v_and_b32 v3, 15, v1']
        for q in range(4):
            r+=[f'v_add_u32 v4, {4*q}, v2','v_xor_b32 v4, v4, v3','v_lshlrev_b32 v4, 4, v4','v_lshl_add_u32 v4, v2, 11, v4',f'v_add_u32 v{8+q}, {4*q*2048-1024*q}, v4']
        r+=['s_lshl_b32 s41, s39, 15','s_lshl_b32 s36, s34, 8','s_add_u32 s41, s41, s36','s_add_u32 s42, s41, 0x8000',
            's_lshl_b32 s43, s3, 13','s_add_u32 s43, s43, 0x20000']
        for h in range(2):
            l.append((f's_add_u32 m0, s43, {4096*h}',None))
            for q in range(4):
                l.append((f'buffer_load_dwordx4 v{8+q}, s[20:23], s{41+h} offen offset:{1024*q} lds',('R',0)))
        return r,l
    o,vm=g128_main(L,'a2',128,64,sc1x=sc1x,pre=pre)
    e=['s_lshl_b32 s40, s39, 15','s_lshl_b32 s36, s34, 12','s_add_u32 s40, s40, s36','v_lshlrev_b32 v92, 4, v1','v_add_u32 v93, 0x8000, v92',
       's_lshl_b32 s36, s33, 3','s_add_u32 s36, s36, s34','s_lshl_b32 s36, s36, 7','v_mov_b32 v2, 0',
       f'{L}_poll:','buffer_load_dword v3, v2, s[28:31], s36 offen sc1','s_waitcnt vmcnt(0)','v_readfirstlane_b32 s37, v3','s_nop 1','s_cmp_eq_u32 s37, 1',
       f's_cbranch_scc1 {L}_go','s_sleep 2',f's_branch {L}_poll',f'{L}_go:']
    for j in range(2):
        for T in range(4): e.append(f'buffer_load_dwordx4 {vr(96+(j*4+T)*4,4)}, v{92+j}, s[44:47], s40 offen offset:{1024*T} sc1')
    e+=['v_and_b32 v2, 15, v1','v_lshrrev_b32 v3, 5, v1','v_bfe_u32 v4, v1, 4, 1','v_lshlrev_b32 v4, 3, v4','v_lshl_add_u32 v4, v2, 8, v4','v_add_u32 v4, s43, v4']
    for t in range(8): e+=[f'v_add_u32 v5, {2*t}, v3','v_xor_b32 v5, v5, v2',f'v_lshl_add_u32 v{64+t}, v5, 4, v4']
    for j in range(2):
        for t in range(8): e.append(f'ds_read_b64 {vr(128+(j*8+t)*2,2)}, v{64+t} offset:{4096*j}')
    e+=['v_lshlrev_b32 v12, 4, v1','v_add_u32 v12, s43, v12']
    for j in range(2):
        for T in range(4):
            e.append(f's_waitcnt vmcnt({7-(j*4+T)}) lgkmcnt(0)' if (j,T)==(0,0) else f's_waitcnt vmcnt({7-(j*4+T)})')
            e+=unpack8(96+(j*4+T)*4,40)
            for h in range(2):
                xr=128+(j*8+2*T+h)*2
                e+=[f'v_lshlrev_b32 v{48+4*h}, 16, v{xr}',f'v_and_b32 v{49+4*h}, 0xffff0000, v{xr}',f'v_lshlrev_b32 v{50+4*h}, 16, v{xr+1}',f'v_and_b32 v{51+4*h}, 0xffff0000, v{xr+1}']
            xs=[accr(2*T,j),accr(2*T,j)+2,accr(2*T+1,j),accr(2*T+1,j)+2]; P=list(enumerate(xs))
            e+=[f'v_pk_fma_f32 {vr(x,2)}, {vr(x,2)}, {vr(40+2*k,2)}, {vr(48+2*k,2)}' for k,x in P]
            d=56+4*(T&1)
            e+=[f'v_cvt_pk_bf16_f32 v{d+k}, v{x}, v{x+1}' for k,x in P]
            for h in range(2): e.append(f'ds_write_b64 v{64+2*T+h}, {vr(d+2*h,2)} offset:{4096*j}')
        e.append('s_waitcnt lgkmcnt(0)')
        for q in range(4): e.append(f'ds_read_b128 {vr(224+(j*4+q)*4,4)}, v12 offset:{4096*j+1024*q}')
        for q in range(4):
            e+=[f's_waitcnt lgkmcnt({3-q})',f'buffer_store_dwordx4 {vr(224+(j*4+q)*4,4)}, v{8+q}, s[16:19], s{41+j} offen offset:{1024*q}']
    return o+fix(e)

def ptrs(*pairs):
    return [f's_load_dwordx2 s[{d}:{d+1}], s[0:1], {ARG[n]}' for d,n in pairs]

def b1_kernel(name='b1_kernel'):
    o=kernel_header(name)+['s_cmp_ge_u32 s2, 128','s_cbranch_scc1 B1_end']+ptrs((4,'ws'),(6,'w1'))+lane_setup()+['s_mov_b32 s35, s2']+tile_ids()+['s_waitcnt lgkmcnt(0)']
    o+=srd(8,4,WS_XN2,4*MB)+srd(12,6,0,2*MB)+srd(16,4,WS_H,4*MB)
    return fix(o)+b1_body('B1')+['B1_end:','s_endpgm'], kernel_desc(name,384,256), (128,256,131072)
def b2_kernel(name='b2_kernel'):
    o=kernel_header(name)+['s_cmp_ge_u32 s2, 128','s_cbranch_scc1 B2_end']+ptrs((4,'ws'),(6,'w2'))+lane_setup()+['s_mov_b32 s35, s2']+tile_ids()+['s_waitcnt lgkmcnt(0)']
    o+=srd(8,4,WS_H,4*MB)+srd(12,6,0,2*MB)+srd(16,4,WS_X1,4*MB)+srd(20,4,WS_XN,4*MB)+srd(28,4,WS_ST,131072)
    return fix(o)+b2_body('B2')+['B2_end:','s_endpgm'], kernel_desc(name,384,256), (128,256,131072)
def f2_kernel(name='f2_kernel'):
    o=kernel_header(name)+['s_cmp_ge_u32 s2, 256','s_cbranch_scc1 F2_end']+ptrs((4,'ws'),(6,'w4'),(48,'wo'),(50,'x'),(52,'out'))+lane_setup()
    o+=['s_and_b32 s35, s2, 127']+tile_ids()+['s_waitcnt lgkmcnt(0)']+srd(28,4,WS_FL,16384)
    o+=['s_cmp_ge_u32 s2, 128','s_cbranch_scc1 F2_a2']
    o+=srd(8,4,WS_H3,14*MB)+srd(12,6,0,7*MB)+srd(16,4,WS_G,4*MB)+srd(20,4,WS_X1,4*MB)
    o=fix(o)+b4_body('B4')+['s_endpgm','F2_a2:']
    o+=fix(srd(8,4,WS_O,16*MB)+srd(12,48,0,8*MB)+srd(16,52,0,4*MB)+srd(20,50,0,4*MB)+srd(44,4,WS_G,4*MB))
    return o+a2_body('A2')+['F2_end:','s_endpgm'], kernel_desc(name,384,256), (256,256,163840)
```

```python
from common import *
from k_g128 import ptrs
vA,vB,vD,vX,WSL,XB=8,16,24,28,32,128
quad=lambda t,j: (t*4+j)*4
acc=lambda t,j: vr(quad(t,j),4,'a')
xbuf=lambda i,j,ks: vr(XB+(i%4)*32+j*8+ks*4,4)
EPS=1e-5

def g256_main(L, ldw, vm, sc1x=False, extra=lambda m: [], body0=(), setup=()):
    o=[]; A=o.append; X=o.extend; KT=16
    X(wdma_offsets(vD,ldw))
    A('s_add_u32 s26, s25, 256'); A('s_lshl_b32 s27, s3, 12')
    A('s_lshl_b32 s39, s33, 4'); A('s_lshl_b32 s36, s3, 2'); A('s_add_u32 s39, s39, s36')
    A('s_lshl_b32 s24, s39, 15')
    A(f'v_lshlrev_b32 v{vX}, 4, v1')
    for j in range(1,4): A(f'v_add_u32 v{vX+j}, {j*32768}, v{vX}')
    sc=' sc1' if sc1x else ''
    def wdma(m):
        if m>=KT: return extra(m-KT)
        r=[]
        for h in range(2):
            r.append((f's_add_u32 m0, s27, {(m%4)*16384+h*65536}',None))
            r+=[(f'buffer_load_dwordx4 v{vD+q}, s[12:15], s{25+h} offen offset:{1024*q} lds',('W',m)) for q in range(4)]
            r.append((f's_add_u32 s{25+h}, s{25+h}, {64*ldw}',None))
        return r
    def xload(m):
        if m>=KT: return []
        r=[(f'buffer_load_dwordx4 {xbuf(m,j,ks)}, v{vX+j}, s[8:11], s24 offen offset:{1024*ks}{sc}',('X',m)) for j in range(4) for ks in range(2)]
        return r+[('s_add_u32 s24, s24, 2048',None)]
    g=Gemm(4,2,KT,4,3,acc,xbuf,WSL,4,vA,vB,vm,wdma,xload,body0=list(body0))
    X(g.prologue_loads()); X(setup); X(tr_bases(vA,vB))
    return fix(o)+finish_gemm(g,4,L+'_loop','s32')

def b3_body(L, sc1x=False, sc1=False):
    vm=VM(); sc=' sc1' if sc1x else ''
    setup=['v_and_b32 v2, 15, v1','v_lshrrev_b32 v3, 4, v1','v_lshlrev_b32 v2, 6, v2','v_lshl_add_u32 v64, v3, 4, v2','s_lshl_b32 s40, s39, 10',
           'v_lshlrev_b32 v65, 2, v0','s_lshl_b32 s41, s34, 10','s_add_u32 s42, s41, 14336','s_add_u32 s43, s41, 28672','s_add_u32 s44, s41, 43008']
    b0=[(f'buffer_load_dwordx4 {vr(96+4*j,4)}, v64, s[20:23], s40 offen offset:{1024*j}{sc}',('R',0)) for j in range(4)]
    b0+=[(f'buffer_load_dword v{112+q}, v65, s[28:31], s{41+q} offen',('R',0)) for q in range(4)]
    o=['s_lshl_b32 s25, s34, 9']+g256_main(L,7168,vm,sc1x=sc1x,body0=b0,setup=setup)
    e=['s_waitcnt vmcnt(0)','v_add_f32 v112, v112, v113','v_add_f32 v114, v114, v115','v_add_f32 v112, v112, v114',
       'v_add_u32 v65, 0x20000, v65','ds_write_b32 v65, v112']
    for j in range(4):
        s=96+4*j; c=66+8*j+ (0)
        c=116+0
        e+=[f'v_add_f32 v2, v{s}, v{s+2}']+xrow_sum(2,3)+[f'v_mul_f32 v2, {fhex(0.125)}, v2',
            f'v_sub_f32 v3, v{s}, v2',f'v_sub_f32 v4, v{s+2}, v2','v_mul_f32 v3, v3, v3','v_fmac_f32 v3, v4, v4',
            f'v_add_f32 v4, v{s+1}, v{s+3}',f'v_fmac_f32 v4, {fhex(128.0)}, v3']+xrow_sum(4,3)
        p=32+8*j
        e+=[f'v_mov_b32 v5, {fhex(EPS)}',f'v_fmac_f32 v5, {fhex(1/1024)}, v4','v_rsq_f32 v6, v5',f'v_sqrt_f32 v{p+6}, v5',
            f'v_sub_f32 v{p}, 0, v2',f'v_mov_b32 v{p+1}, v{p}',
            f'v_mul_f32 v{p+2}, {fhex(GC0)}, v6',f'v_mov_b32 v{p+3}, v{p+2}',
            'v_mul_f32 v7, v6, v6','v_mul_f32 v7, v7, v6',f'v_mul_f32 v{p+4}, {fhex(GC1)}, v7',f'v_mov_b32 v{p+5}, v{p+4}',f'v_mov_b32 v{p+7}, v{p+6}']
    e+=['s_waitcnt lgkmcnt(0)','s_barrier','v_lshrrev_b32 v2, 4, v1','v_lshlrev_b32 v2, 4, v2','v_add_u32 v2, 0x20000, v2']
    for t in range(16): e.append(f'ds_read_b128 {vr(128+4*t,4)}, v2 offset:{64*t}')
    e+=[f's_mul_i32 s24, s39, {112*1024}','s_lshl_b32 s36, s34, 13','s_add_u32 s24, s24, s36','s_add_u32 s25, s24, 4096',f'v_lshlrev_b32 v{vX}, 4, v1']
    for j in range(1,4): e.append(f'v_add_u32 v{vX+j}, {j*112*1024}, v{vX}')
    e.append('s_waitcnt lgkmcnt(0)')
    st=' sc1' if sc1 else ''
    n=0
    for T in range(8):
        for j in range(4):
            p=32+8*j; u=64+8*(n&1); t=80; d=88+4*(n&1); n+=1
            e+=[f'v_accvgpr_read_b32 v{u+k}, a{quad(2*T+(k>>2),j)+(k&3)}' for k in range(8)]
            R=range(4)
            e+=[f'v_pk_fma_f32 {vr(u+2*k,2)}, {vr(128+8*T+2*k,2)}, {vr(p,2)}, {vr(u+2*k,2)}' for k in R]
            e+=[f'v_pk_mul_f32 {vr(t+2*k,2)}, {vr(u+2*k,2)}, {vr(u+2*k,2)}' for k in R]
            e+=[f'v_pk_fma_f32 {vr(t+2*k,2)}, {vr(t+2*k,2)}, {vr(p+4,2)}, {vr(p+2,2)}' for k in R]
            e+=[f'v_pk_mul_f32 {vr(t+2*k,2)}, {vr(t+2*k,2)}, {vr(u+2*k,2)}' for k in R]
            e+=[f'v_exp_f32 v{t+k}, v{t+k}' for k in range(8)]
            e+=[f'v_pk_fma_f32 {vr(t+2*k,2)}, {vr(t+2*k,2)}, {vr(p+6,2)}, {vr(p+6,2)}' for k in R]
            e+=[f'v_rcp_f32 v{t+k}, v{t+k}' for k in range(8)]
            e+=[f'v_pk_mul_f32 {vr(u+2*k,2)}, {vr(u+2*k,2)}, {vr(t+2*k,2)}' for k in R]
            e+=[f'v_cvt_pk_bf16_f32 v{d+k}, v{u+2*k}, v{u+2*k+1}' for k in R]
            e.append(f'buffer_store_dwordx4 {vr(d,4)}, v{vX+j}, s[16:19], s{24+(T>>2)} offen offset:{1024*(T&3)}{st}')
    return o+fix(['s_nop 7']+e)

def b3_ids():
    return ['s_and_b32 s36, s35, 7','s_lshr_b32 s37, s35, 3','s_lshr_b32 s33, s36, 1','s_lshl_b32 s33, s33, 1',
            's_cmp_ge_u32 s37, 7','s_cselect_b32 s38, 1, 0','s_add_u32 s33, s33, s38','s_mul_i32 s38, s38, 7','s_sub_u32 s37, s37, s38',
            's_and_b32 s34, s36, 1','s_mul_i32 s34, s34, 7','s_add_u32 s34, s34, s37']
def b3_kernel(name='b3_kernel'):
    o=kernel_header(name)+['s_cmp_ge_u32 s2, 112','s_cbranch_scc1 B3_end']+ptrs((4,'ws'),(6,'w3'))+lane_setup()+['s_mov_b32 s35, s2']+b3_ids()+['s_waitcnt lgkmcnt(0)']
    o+=srd(8,4,WS_X1,4*MB)+srd(12,6,0,7*MB)+srd(16,4,WS_H3,14*MB)+srd(20,4,WS_ST,131072)+srd(28,4,WS_CS,4*3584*4)
    return fix(o)+b3_body('B3')+['B3_end:','s_endpgm'], kernel_desc(name,512,256), (112,256,163840)

QS=LOG2E*128**-0.5
vKB,vKD,vVD=8,24,28
vKDp,vVDp=64,68
NEGM,LACC,ONES,KSL,VSL,SB=32,48,12,64,96,128
Qf=lambda j,T: vr(quad(2*T,j),4,'a')
Of=lambda dt,j: vr(quad(2*dt+1,j),4,'a')
Sq=lambda b,kt,j: SB+(b&1)*64+(kt*4+j)*4

def kv_dma(kind, b, vk, vv):
    if kind=='K':
        r=[(f's_add_u32 m0, s27, {(b%4)*16384}',None)]+[(f'buffer_load_dwordx4 v{vk+q}, s[20:23], s41 offen offset:{1024*q} lds',('K',b)) for q in range(4)]
        return r+[('s_add_u32 s41, s41, 0x4000',None),('s_and_b32 s41, s41, 0x1ffff',None)]
    r=[(f's_add_u32 m0, s27, {(b%4)*16384+65536}',None)]+[(f'buffer_load_dwordx4 v{vv+(q&1)}, s[28:31], s42 offen offset:{1024*q} lds',('V',b)) for q in range(4)]
    return r+[('s_add_u32 s42, s42, 0x4000',None),('s_and_b32 s42, s42, 0x1ffff',None)]

def kreads(b,kt): return [f'ds_read_b128 {vr(KSL+(kt&1)*16+4*ks,4)}, v{vKB+ks} offset:{(b%4)*16384+kt*4096}' for ks in range(4)]
def vreads(b,dt): return [f'ds_read_b64_tr_b16 {vr(VSL+(dt&3)*8+4*u+2*hf,2)}, v{vB+dt} offset:{(b%4)*16384+(32*u+16*hf)*256}' for u in range(2) for hf in range(2)]
def smf(b,kt,j,ks,raw=False):
    d=vr(Sq(b,kt,j),4); c=d if ks else ('0' if raw else vr(NEGM+4*j,4))
    return f'v_mfma_f32_16x16x32_bf16 {d}, {vr(KSL+(kt&1)*16+4*ks,4)}, {Qf(j,ks)}, {c}'

def attn_pass(vm):
    phases=[('S',0),('S',1)]
    for b in range(2,8): phases+=[('V',b-2),('S',b)]
    phases+=[('V',6),('V',7)]
    G=[]
    for k,b in phases:
        if k=='S':
            for kt in range(4):
                if (b,kt)==(0,0): continue
                G.append(dict(k=k,b=b,i=kt,m=[smf(b,kt,j,ks) for j in range(4) for ks in range(4)],r=kreads(b,kt)))
        else:
            for dt in range(8):
                m=[]
                for j in range(4):
                    for u in range(2):
                        c='0' if (b==0 and u==0) else Of(dt,j)
                        m.append(f'v_mfma_f32_16x16x32_bf16 {Of(dt,j)}, {vr(VSL+(dt&3)*8+4*u,4)}, {vr(Sq(b,2*u,j),4)}, {c}')
                if dt&1:
                    j=dt>>1; l=vr(LACC+4*j,4)
                    for u in range(2): m.append(f'v_mfma_f32_16x16x32_bf16 {l}, {vr(ONES,4)}, {vr(Sq(b,2*u,j),4)}, {"0" if (b==0 and u==0) else l}')
                G.append(dict(k=k,b=b,i=dt,m=m,r=vreads(b,dt)))
    n=0
    for g in G: g['g0']=n; n+=len(g['m'])
    NG=n; gaps=[[] for _ in range(NG)]; load=[0]*NG; hascvt=[False]*NG
    host={}
    for x,g in enumerate(G):
        if x==0: continue
        h=x-1
        if g['k']=='V' and G[x-1]['k']=='V' : h=x-2
        if g['k']=='S' and G[x-1]['k']=='V': h=x-2
        host.setdefault(h,[]).append(x)
    order=[]
    for h,xs in sorted(host.items()):
        g=G[h]; L=len(g['m']); rs=[(x,r) for x in xs for r in G[x]['r']]
        step=2 if len(rs)*2<=L else 1
        for k,(x,r) in enumerate(rs):
            gp=g['g0']+k*step; gaps[gp].append((r,None)); load[gp]+=1; order.append((gp,x))
    issue={1:['V2'],2:['K4','K5','V3'],3:['K6','V4'],4:['K7','V5'],5:['K8','V6'],6:['K9','V7'],7:['V8'],8:[]}
    bar={}
    for x,g in enumerate(G):
        if g['i']==0 and x>0 and (g['k']=='S' or g['b']==7):
            bb=g['b'] if g['k']=='S' else 8
            bar[min(gp for gp,xx in order if xx==x)]=bb
    for x,g in enumerate(G):
        gp=g['g0']-2
        if x==0: continue
        lastr=max(k for k,(q,xx) in enumerate(order) if xx==x)
        later=sum(1 for k,(q,xx) in enumerate(order) if k>lastr and q<=gp)
        assert order[lastr][0]<=gp and later<=15
        gaps[gp].append((f's_waitcnt lgkmcnt({later})',None)); load[gp]+=1
    def put(items, g0):
        gp=g0
        for it in items:
            while load[gp]>=2 or (gp&1): gp+=1
            gaps[gp].append(it); load[gp]+=1; gp+=2
    put(kv_dma('K',2,vKD,vVD)+kv_dma('K',3,vKD,vVD)+kv_dma('V',1,vKD,vVD),0)
    for gp,bb in sorted(bar.items()):
        items=[]
        for t in issue[bb]: items+=kv_dma(t[0],int(t[1]),vKD,vVD)
        put(items,gp+2)
    sg={(g['b'],g['i']):g['g0'] for g in G if g['k']=='S'}; vg={g['b']:g['g0'] for g in G if g['k']=='V' and g['i']==0}
    cur=0; curc=0; forced=0
    for b in range(8):
        dead=vg[b]-2
        ex=[]
        for kt in range(4):
            for j in range(4):
                q=Sq(b,kt,j); rdy=(sg[(b,kt)]+4*j+3+8) if (b,kt)!=(0,0) else 2*j+2
                ex+=[(f'v_exp_f32 v{q+i}, v{q+i}',rdy,kt,j) for i in range(4)]
        if b==0:
            for j in range(4):
                for i in range(4):
                    q=Sq(0,0,j); gp=2*j+(i>>1); gaps[gp].insert(0,(f'v_add_f32 v{q+i}, v{q+i}, v{NEGM+4*j}',None)); load[gp]+=1
        w0=max(cur,ex[0][1]); w1=dead-8 if b in(0,7) else dead-32
        done={}
        for k,(txt,rdy,kt,j) in enumerate(ex):
            gp=max(cur,rdy,w0+(k*(w1-w0))//len(ex))
            while gp<dead-4 and load[gp]!=0: gp+=1
            if gp>=dead-4: gp=max(cur,dead-4); forced+=1
            gaps[gp].append((txt,None)); load[gp]+=2; cur=gp; done[(kt,j)]=gp
        for u in range(2):
            for j in range(4):
                p=Sq(b,2*u,j); q=Sq(b,2*u+1,j)
                for txt in (f'v_cvt_pk_bf16_f32 v{p}, v{p}, v{p+1}',f'v_cvt_pk_bf16_f32 v{p+1}, v{p+2}, v{p+3}',
                            f'v_cvt_pk_bf16_f32 v{p+2}, v{q}, v{q+1}',f'v_cvt_pk_bf16_f32 v{p+3}, v{q+2}, v{q+3}'):
                    gp=max(curc,done[(2*u+1,j)]+1)
                    while gp<dead and (load[gp]>1 or hascvt[gp] or ((gp&1) and gp<dead-12)): gp+=1
                    if gp>=dead: gp=dead; forced+=1
                    gaps[gp].append((txt,None)); load[gp]+=1; hascvt[gp]=True; curc=gp
    print('attn: gaps',NG,'forced',forced,'overloaded',sum(l>2 for l in load),'empty',sum(l==0 for l in load))
    out=[]; ms=[m for g in G for m in g['m']]
    for k in range(NG):
        out.append(ms[k])
        if k in bar:
            bb=bar[k]; out+=[f's_waitcnt vmcnt({vm.wait({("K",bb),("V",bb-1)})})','s_barrier']
        for txt,tag in gaps[k]:
            if tag: vm.issue(tag)
            out.append(txt)
    return out

def a1_body(L, sc1=False):
    vm=VM()
    setup=['v_lshrrev_b32 v2, 4, v1','v_and_b32 v3, 15, v1','v_lshlrev_b32 v4, 8, v2','v_add_u32 v4, s27, v4','s_mov_b32 s41, 0','s_mov_b32 s42, 0']
    for q in range(4): setup+=[f'v_add_u32 v5, {4*q}, v2','v_xor_b32 v5, v5, v3',f'v_lshl_add_u32 v{vKDp+q}, v5, 4, v4']
    for q in range(2): setup+=[f'v_add_u32 v5, {4*q}, v2','v_lshlrev_b32 v5, 1, v5','v_xor_b32 v5, v5, v3',f'v_lshl_add_u32 v{vVDp+q}, v5, 4, v4']
    extra=lambda m: kv_dma('K',0,vKDp,vVDp)+kv_dma('V',0,vKDp,vVDp) if m==0 else kv_dma('K',1,vKDp,vVDp)
    o=['s_lshl_b32 s25, s34, 9']+g256_main(L,8192,vm,extra=extra,setup=setup)
    e=['s_nop 7']+[f'v_mov_b32 v{vKD+q}, v{vKDp+q}' for q in range(4)]+[f'v_mov_b32 v{vVD+q}, v{vVDp+q}' for q in range(2)]
    e+=['v_and_b32 v2, 15, v1','v_bfe_u32 v3, v1, 4, 1','v_bfe_u32 v4, v1, 5, 1','v_lshl_add_u32 v3, v3, 1, v4','v_lshlrev_b32 v4, 8, v2']
    for ks in range(4): e+=[f'v_add_u32 v5, {4*ks}, v3','v_xor_b32 v5, v5, v2',f'v_lshl_add_u32 v{vKB+ks}, v5, 4, v4']
    e+=[f'v_mov_b32 v{ONES+k}, 0x3f803f80' for k in range(4)]+vconst2(2,QS)
    n=0
    for h in range(2):
        for T in range(4):
            for j in range(4):
                u=128+8*(n&3); d=160+4*(n&3); n+=1
                e+=[f'v_accvgpr_read_b32 v{u+k}, a{quad(8*h+2*T+(k>>2),j)+(k&3)}' for k in range(8)]
                e+=[f'v_pk_mul_f32 {vr(u+2*k,2)}, {vr(u+2*k,2)}, v[2:3]' for k in range(4)]
                e+=[f'v_cvt_pk_bf16_f32 v{d+k}, v{u+2*k}, v{u+2*k+1}' for k in range(4)]
                e+=['s_nop 0',f'v_permlane16_swap_b32 v{d}, v{d+2}',f'v_permlane16_swap_b32 v{d+1}, v{d+3}']
                e+=[f'v_accvgpr_write_b32 a{quad(8*h+2*T,j)+k}, v{d+k}' for k in range(4)]
    e+=['s_lshl_b32 s43, s39, 17','s_lshl_b32 s36, s34, 13','s_add_u32 s43, s43, s36','v_lshlrev_b32 v30, 4, v1',
        's_mov_b32 s44, 0','s_mov_b32 s45, 0','s_lshl_b32 s36, s3, 2','s_add_u32 s36, s36, 0x20000','v_mov_b32 v31, s36',
        f's_waitcnt vmcnt({vm.wait({("K",0)})})','s_barrier',f'{L}_pass:']
    e+=kreads(0,0)+kreads(0,1)+['s_waitcnt lgkmcnt(4)']+[smf(0,0,j,ks,raw=True) for j in range(4) for ks in range(4)]
    e+=['s_cmp_lg_u32 s45, 0',f's_cbranch_scc1 {L}_havemax','s_nop 4']
    J=range(4)
    e+=[f'v_max3_f32 v{NEGM+4*j}, v{Sq(0,0,j)}, v{Sq(0,0,j)+1}, v{Sq(0,0,j)+2}' for j in J]
    e+=[f'v_max_f32 v{NEGM+4*j}, v{NEGM+4*j}, v{Sq(0,0,j)+3}' for j in J]
    def xmax():
        r=[]
        for sw in ('16','32'):
            r+=[f'v_mov_b32 v{NEGM+4*j+1}, v{NEGM+4*j}' for j in J]
            r+=[f'v_permlane{sw}_swap_b32 v{NEGM+4*j+1}, v{NEGM+4*j}' for j in J]
            r+=[f'v_max_f32 v{NEGM+4*j}, v{NEGM+4*j}, v{NEGM+4*j+1}' for j in J]
        r+=[f'v_sub_f32 v{NEGM+4*j}, 0, v{NEGM+4*j}' for j in J]
        r+=[f'v_mov_b32 v{NEGM+4*j+k}, v{NEGM+4*j}' for j in J for k in (1,2,3)]
        return r
    e+=xmax()+[f'{L}_havemax:','s_waitcnt lgkmcnt(0)','s_nop 4']
    e+=attn_pass(vm)
    e+=['s_nop 7',f'v_max3_f32 v2, v{LACC}, v{LACC+4}, v{LACC+8}',f's_mov_b32 s36, {fhex(2.0**40)}']
    e+=[f'v_cmp_nlt_f32 s[46:47], v{LACC}, s36']+sum([[f'v_cmp_nlt_f32 vcc, v{LACC+4*j}, s36','s_or_b64 s[46:47], s[46:47], vcc'] for j in (1,2,3)],[])
    e+=['s_cmp_lg_u64 s[46:47], 0','s_cselect_b32 s36, 1, 0','v_mov_b32 v2, s36','ds_write_b32 v31, v2']
    e+=[f'v_rcp_f32 v{LACC+4*j}, v{LACC+4*j}' for j in J]+[f'v_mov_b32 v{LACC+4*j+1}, v{LACC+4*j}' for j in J]
    st=' sc1' if sc1 else ''
    n=0
    for j in J:
        for T in range(4):
            u=128+8*(n&3); d=160+4*(n&3); n+=1
            e+=[f'v_accvgpr_read_b32 v{u+k}, a{quad(2*(2*T+(k>>2))+1,j)+(k&3)}' for k in range(8)]
            e+=[f'v_pk_mul_f32 {vr(u+2*k,2)}, {vr(u+2*k,2)}, {vr(LACC+4*j,2)}' for k in range(4)]
            e+=[f'v_cvt_pk_bf16_f32 v{d+k}, v{u+2*k}, v{u+2*k+1}' for k in range(4)]
            e.append(f'buffer_store_dwordx4 {vr(d,4)}, v30, s[16:19], s43 offen offset:{1024*T}{st}'); vm.issue(('O',0))
        e.append('s_add_u32 s43, s43, 0x20000')
    e+=['s_sub_u32 s43, s43, 0x80000',f's_waitcnt vmcnt({vm.wait({("K",8)})}) lgkmcnt(0)','s_barrier','v_mov_b32 v2, 0x20000','ds_read_b128 v[4:7], v2','s_waitcnt lgkmcnt(0)',
        'v_or3_b32 v4, v4, v5, v6','v_or_b32 v4, v4, v7','v_readfirstlane_b32 s36, v4','s_andn2_b32 s36, s36, s45','s_cmp_lg_u32 s36, 0',f's_cbranch_scc1 {L}_slow',
        's_cmp_lg_u32 s44, 0',f's_cbranch_scc1 {L}_done','s_mov_b32 s44, 1','s_mov_b32 s45, 0','s_add_u32 s43, s43, 4096']
    e+=[f'v_accvgpr_mov_b32 a{quad(2*T,j)+k}, a{quad(8+2*T,j)+k}' for T in range(4) for j in J for k in range(4)]
    e+=[f's_branch {L}_pass']
    e+=[f'{L}_slow:','s_waitcnt vmcnt(0)','s_barrier','s_mov_b32 s45, 1','s_mov_b32 s41, 0','s_mov_b32 s42, 0','s_mov_b32 s32, 8']
    e+=[f'v_mov_b32 v{NEGM+4*j}, 0xff800000' for j in J]+[f'{L}_mx:']
    e+=[t for t,_ in kv_dma('K',0,vKD,vVD)]+['s_waitcnt vmcnt(0)','s_barrier']
    for kt in range(4):
        e+=kreads(0,kt)+['s_waitcnt lgkmcnt(0)']+[smf(0,kt,j,ks,raw=True) for j in J for ks in range(4)]
    e+=['s_nop 7']
    for kt in range(4):
        for j in J:
            q=Sq(0,kt,j); e+=[f'v_max3_f32 v{NEGM+4*j}, v{NEGM+4*j}, v{q}, v{q+1}',f'v_max3_f32 v{NEGM+4*j}, v{NEGM+4*j}, v{q+2}, v{q+3}']
    e+=['s_barrier','s_sub_u32 s32, s32, 1','s_cmp_lg_u32 s32, 0',f's_cbranch_scc1 {L}_mx']+xmax()
    e+=[t for t,_ in kv_dma('K',0,vKD,vVD)+kv_dma('V',0,vKD,vVD)+kv_dma('K',1,vKD,vVD)]+['s_waitcnt vmcnt(0)','s_barrier',f's_branch {L}_pass',f'{L}_done:']
    rep=[]; e=fix(e,rep); print('a1 nops',len(rep))
    return o+e

def a1_ids():
    return ['s_and_b32 s36, s35, 7','s_lshr_b32 s38, s35, 3','s_lshr_b32 s37, s36, 1','s_lshl_b32 s34, s37, 2','s_and_b32 s33, s38, 3','s_add_u32 s34, s34, s33',
            's_and_b32 s33, s36, 1','s_lshl_b32 s33, s33, 2','s_lshr_b32 s38, s38, 2','s_add_u32 s33, s33, s38']
def a1_srds():
    o=srd(8,4,WS_XN,4*MB)+srd(12,6,0,8*MB)+srd(16,4,WS_O,16*MB)
    o+=['s_lshl_b32 s37, s37, 19','s_add_u32 s37, s37, 0x60000']
    for d,p in ((20,48),(28,50)):
        o+=[f's_add_u32 s{d}, s{p}, s37',f's_addc_u32 s{d+1}, s{p+1}, 0',f's_mov_b32 s{d+2}, 0x20000',f's_mov_b32 s{d+3}, 0x20000']
    return o
def a1_kernel(name='a1_kernel'):
    o=kernel_header(name)+['s_cmp_ge_u32 s2, 128','s_cbranch_scc1 A1_end']+ptrs((4,'ws'),(6,'wq'),(48,'k'),(50,'v'))+lane_setup()+['s_mov_b32 s35, s2']+a1_ids()+['s_waitcnt lgkmcnt(0)']
    o+=a1_srds()
    return fix(o)+a1_body('A1')+['A1_end:','s_endpgm'], kernel_desc(name,512,256), (128,256,163840)
```

```python
from common import *
EPS=1e-5
def ln_kernel(name='ln_kernel'):
    o=kernel_header(name)
    A=o.append; X=o.extend
    A('s_cmp_ge_u32 s2, 240'); A('s_cbranch_scc1 LN_end')
    A(f's_load_dwordx2 s[4:5], s[0:1], {ARG["x"]}'); A(f's_load_dwordx2 s[6:7], s[0:1], {ARG["ws"]}'); A(f's_load_dwordx2 s[24:25], s[0:1], {ARG["w3"]}')
    X(lane_setup())
    A('s_cmp_ge_u32 s2, 128'); A('s_cbranch_scc1 LN_cs')
    A('v_and_b32 v2, 15, v1')
    A('s_lshl_b32 s26, s2, 4'); A('v_add_u32 v3, s26, v2'); A('v_lshlrev_b32 v3, 11, v3')
    A('v_bfe_u32 v4, v1, 4, 1'); A('v_bfe_u32 v5, v1, 5, 1'); A('v_lshl_add_u32 v4, v4, 1, v5')
    A('v_lshl_add_u32 v4, v4, 4, v3')
    A('s_lshl_b32 s27, s3, 8')
    A('s_waitcnt lgkmcnt(0)')
    X(srd(8,4,0,4*MB)); X(srd(12,6,WS_XN,4*MB)); X(srd(16,6,WS_XN2,4*MB)); X(srd(20,6,WS_FL,16384))
    for f in range(4): A(f'buffer_load_dwordx4 {vr(8+4*f,4)}, v4, s[8:11], s27 offen offset:{64*f}')
    A('buffer_load_ushort v6, v3, s[8:11], 0 offen')
    A('s_cmp_ge_u32 s2, 8'); A('s_cbranch_scc1 LN_nofl')
    A('s_lshl_b32 s28, s2, 11'); A('v_lshlrev_b32 v7, 2, v0'); A('v_mov_b32 v5, 0'); A('buffer_store_dword v5, v7, s[20:23], s28 offen')
    A('LN_nofl:')
    A('v_lshlrev_b32 v7, 4, v1')
    A('s_lshl_b32 s28, s2, 15'); A('s_lshl_b32 s29, s3, 12'); A('s_add_u32 s28, s28, s29')
    A('v_mov_b32 v24, 0'); A('v_mov_b32 v25, 0'); A('v_mov_b32 v26, 0'); A('v_mov_b32 v27, 0')
    A('s_waitcnt vmcnt(0)')
    A('v_lshlrev_b32 v28, 16, v6'); A('v_mov_b32 v29, v28')
    for f in range(4):
        b=8+4*f
        A(f'v_permlane16_swap_b32 v{b}, v{b+2}'); A(f'v_permlane16_swap_b32 v{b+1}, v{b+3}')
    for r in range(16):
        A(f'v_lshlrev_b32 v{32+2*r}, 16, v{8+r}'); A(f'v_and_b32 v{33+2*r}, 0xffff0000, v{8+r}')
    for r in range(16): A(f'v_pk_add_f32 {vr(32+2*r,2)}, {vr(32+2*r,2)}, v[28:29] neg_lo:[0,1] neg_hi:[0,1]')
    for r in range(16):
        A(f'v_pk_add_f32 v[24:25], v[24:25], {vr(32+2*r,2)}'); A(f'v_pk_fma_f32 v[26:27], {vr(32+2*r,2)}, {vr(32+2*r,2)}, v[26:27]')
    A('v_add_f32 v24, v24, v25'); A('v_add_f32 v25, v26, v27')
    X(xrow_sum(24,26)); X(xrow_sum(25,26))
    A('s_lshl_b32 s29, s3, 3'); A('v_lshlrev_b32 v26, 6, v2'); A('v_add_u32 v27, s29, v26')
    A('ds_write_b64 v27, v[24:25]'); A('s_waitcnt lgkmcnt(0)'); A('s_barrier')
    for k in range(4): A(f'ds_read_b128 {vr(8+4*k,4)}, v26 offset:{16*k}')
    A('s_waitcnt lgkmcnt(0)')
    for k in range(1,8): A(f'v_pk_add_f32 v[8:9], v[8:9], {vr(8+2*k,2)}')
    A(f'v_mul_f32 v8, {fhex(1/1024)}, v8'); A(f'v_mul_f32 v9, {fhex(1/1024)}, v9')
    A('v_fma_f32 v9, -v8, v8, v9'); A('v_max_f32 v9, 0, v9')
    A(f'v_add_f32 v10, {fhex(EPS)}, v9'); A('v_rsq_f32 v10, v10')
    A('v_mul_f32 v12, v10, v10'); A('v_mul_f32 v12, v12, v9'); A(f'v_add_f32 v12, {fhex(EPS)}, v12'); A('v_rsq_f32 v12, v12')
    A('v_mov_b32 v9, v8'); A('v_mov_b32 v11, v10'); A('v_mov_b32 v13, v12')
    for f in range(4):
        b=32+8*f
        for k in range(4): A(f'v_pk_add_f32 {vr(b+2*k,2)}, {vr(b+2*k,2)}, v[8:9] neg_lo:[0,1] neg_hi:[0,1]')
        for k in range(4): A(f'v_pk_mul_f32 {vr(b+2*k,2)}, {vr(b+2*k,2)}, v[10:11]')
        t=16+4*(f&1)
        for k in range(4): A(f'v_cvt_pk_bf16_f32 v{t+k}, v{b+2*k}, v{b+2*k+1}')
        A(f'buffer_store_dwordx4 {vr(t,4)}, v7, s[12:15], s28 offen offset:{1024*f}')
        for k in range(4): A(f'v_pk_mul_f32 {vr(b+2*k,2)}, {vr(b+2*k,2)}, v[12:13]')
        t=24+4*(f&1)
        for k in range(4): A(f'v_cvt_pk_bf16_f32 v{t+k}, v{b+2*k}, v{b+2*k+1}')
        A(f'buffer_store_dwordx4 {vr(t,4)}, v7, s[16:19], s28 offen offset:{1024*f}')
    A('s_endpgm')
    A('LN_cs:')
    A('s_sub_u32 s26, s2, 128'); A('s_and_b32 s27, s26, 3'); A('s_lshr_b32 s26, s26, 2')
    A('s_lshl_b32 s28, s27, 8'); A('s_lshl_b32 s29, s3, 5'); A('s_add_u32 s28, s28, s29'); A('s_mul_i32 s28, s28, 7168')
    A('s_lshl_b32 s29, s26, 8'); A('s_add_u32 s28, s28, s29')
    A('v_lshrrev_b32 v2, 4, v1'); A('v_mul_u32_u24 v2, 7168, v2'); A('v_and_b32 v3, 15, v1'); A('v_lshl_add_u32 v2, v3, 4, v2')
    A('s_waitcnt lgkmcnt(0)')
    X(srd(8,24,0,1024*7168)); X(srd(12,6,WS_CS,4*3584*4))
    for e in range(8):
        A(f'buffer_load_dwordx4 {vr(8+4*e,4)}, v2, s[8:11], s28 offen'); A(f's_add_u32 s28, s28, {4*7168}')
    for k in range(8): A(f'v_mov_b32 v{40+k}, 0')
    for e in range(8):
        A(f's_waitcnt vmcnt({7-e})')
        for k in range(4):
            A(f'v_lshlrev_b32 v{48+2*k}, 16, v{8+4*e+k}'); A(f'v_and_b32 v{49+2*k}, 0xffff0000, v{8+4*e+k}')
        for k in range(4): A(f'v_pk_add_f32 {vr(40+2*k,2)}, {vr(40+2*k,2)}, {vr(48+2*k,2)}')
    for k in range(8): X(xrow_sum(40+k,48+k))
    A('s_lshl_b32 s29, s3, 9'); A('v_lshlrev_b32 v4, 5, v3'); A('v_add_u32 v4, s29, v4')
    A('ds_write_b128 v4, v[40:43]'); A('ds_write_b128 v4, v[44:47] offset:16'); A('s_waitcnt lgkmcnt(0)'); A('s_barrier')
    A('s_cmp_ge_u32 s3, 2'); A('s_cbranch_scc1 LN_end')
    A('v_lshlrev_b32 v4, 2, v0')
    for k in range(8): A(f'ds_read_b32 v{8+k}, v4 offset:{512*k}')
    A('s_mul_i32 s28, s27, 14336'); A('s_lshl_b32 s29, s26, 9'); A('s_add_u32 s28, s28, s29')
    A('s_waitcnt lgkmcnt(0)')
    for k in range(1,8): A(f'v_add_f32 v8, v8, v{8+k}')
    A('buffer_store_dword v8, v4, s[12:15], s28 offen')
    A('LN_end:'); A('s_endpgm')
    return fix(o), kernel_desc(name,64,64,40), (240,512,4096)
```

```python
from build import *
import k_ln, k_g128, k_g256
K={'ln_kernel':k_ln.ln_kernel(),'b1_kernel':k_g128.b1_kernel(),'b2_kernel':k_g128.b2_kernel(),'b3_kernel':k_g256.b3_kernel(),'a1_kernel':k_g256.a1_kernel(),'f2_kernel':k_g128.f2_kernel()}
print(build(K,['ln_kernel','b1_kernel','b2_kernel','b3_kernel','a1_kernel','f2_kernel'],'t2.s'))
build(K,['ln_kernel','b1_kernel','b2_kernel','b3_kernel','a1_kernel','f2_kernel'],'t2u.s',compress=False)
build(K,['ln_kernel','b1_kernel','b2_kernel','b3_kernel','a1_kernel','f2_kernel'],FINAL,hdr=header())
```

```python
from build import *
import k_ln, k_g128, k_g256
K={'ln_kernel':k_ln.ln_kernel(),'b1_kernel':k_g128.b1_kernel(),'b2_kernel':k_g128.b2_kernel(),'b3_kernel':k_g256.b3_kernel(),'a1_kernel':k_g256.a1_kernel(),'f2_kernel':k_g128.f2_kernel()}
K['nop_kernel']=(kernel_header('nop_kernel')+['s_endpgm'],kernel_desc('nop_kernel',8,8,16),(256,256,0))
base=['ln_kernel','b1_kernel','b2_kernel','b3_kernel','a1_kernel','f2_kernel']
build(K,base,'v_base.s',hdr=header())
build(K,base+['nop_kernel']*10,'v_nop10e.s',hdr=header())
build(K,['nop_kernel']*10+base,'v_nop10b.s',hdr=header())
build(K,base[:3]+['nop_kernel']*10+base[3:],'v_nop10m.s',hdr=header())
```

```python
from asmlib import *
from gemm import *
import struct
def f2u(x): return struct.unpack('<I',struct.pack('<f',x))[0]
def fhex(x): return hex(f2u(x))

MB=1<<20
WS_XN=0; WS_XN2=4*MB; WS_H=8*MB; WS_X1=12*MB; WS_G=16*MB
WS_ST=20*MB
WS_CS=20*MB+256*1024
WS_R2=20*MB+384*1024
WS_FL=20*MB+512*1024
WS_H3=24*MB; WS_O=40*MB
ARG=dict(x=0,k=8,v=16,wq=24,wo=32,bx=40,w1=48,w2=56,w3=64,w4=72,out=80,dbg=88,ws=96)
LOG2E=1.4426950408889634
GC0=-2*LOG2E*0.7978845608028654; GC1=GC0*0.044715

def srd(d, p, off, size):
    o=[]
    if off: o+=[f's_add_u32 s{d}, s{p}, {off}', f's_addc_u32 s{d+1}, s{p+1}, 0']
    else: o+=[f's_mov_b32 s{d}, s{p}', f's_mov_b32 s{d+1}, s{p+1}']
    return o+[f's_mov_b32 s{d+2}, {size}', f's_mov_b32 s{d+3}, 0x20000']

def lane_setup(sW='s3'):
    return ['v_and_b32 v1, 63, v0','v_lshrrev_b32 v2, 6, v0','s_nop 0',f'v_readfirstlane_b32 {sW}, v2']

def tr_bases(vA, vB, t0=2):
    o=[f'v_lshrrev_b32 v{t0}, 2, v1', f'v_and_b32 v{t0+1}, 7, v{t0}', f'v_lshlrev_b32 v{t0}, 8, v{t0}',
       f'v_and_b32 v{t0+2}, 3, v1', f'v_lshl_add_u32 v{t0}, v{t0+2}, 3, v{t0}']
    for i in range(8):
        o+=[f'v_xor_b32 v{t0+2}, {i}, v{t0+1}', f'v_lshl_add_u32 v{vA+i}, v{t0+2}, 5, v{t0}']
        if vB is not None: o+=[f'v_add_u32 v{vB+i}, 0x10000, v{vA+i}']
    return o

def wdma_offsets(vD, ldw, sW='s3', t0=2):
    o=[f'v_lshrrev_b32 v{t0}, 4, v1', f's_lshl_b32 s36, {sW}, 4', f'v_add_u32 v{t0+1}, s36, v{t0}',
       f'v_mul_u32_u24 v{t0+1}, {ldw}, v{t0+1}', f'v_and_b32 v{t0+2}, 15, v1']
    for q in range(4):
        o+=[f'v_add_u32 v{t0+3}, {4*(q&1)}, v{t0}', f'v_lshlrev_b32 v{t0+3}, 1, v{t0+3}', f'v_xor_b32 v{t0+3}, v{t0+3}, v{t0+2}',
            f'v_lshl_add_u32 v{t0+3}, v{t0+3}, 4, v{t0+1}', f'v_add_u32 v{vD+q}, {4*q*ldw-1024*q}, v{t0+3}']
    return o

def gelu_pk(xs, t, cA, cB, cOne):
    o=[]; P=list(enumerate(xs))
    for k,x in P: o.append(f'v_pk_mul_f32 {vr(t+2*k,2)}, {vr(x,2)}, {vr(x,2)}')
    for k,x in P: o.append(f'v_pk_fma_f32 {vr(t+2*k,2)}, {vr(t+2*k,2)}, {vr(cB,2)}, {vr(cA,2)}')
    for k,x in P: o.append(f'v_pk_mul_f32 {vr(t+2*k,2)}, {vr(t+2*k,2)}, {vr(x,2)}')
    for k,x in P: o+=[f'v_exp_f32 v{t+2*k}, v{t+2*k}', f'v_exp_f32 v{t+2*k+1}, v{t+2*k+1}']
    for k,x in P: o.append(f'v_pk_add_f32 {vr(t+2*k,2)}, {vr(t+2*k,2)}, {vr(cOne,2)}')
    for k,x in P: o+=[f'v_rcp_f32 v{t+2*k}, v{t+2*k}', f'v_rcp_f32 v{t+2*k+1}, v{t+2*k+1}']
    for k,x in P: o.append(f'v_pk_mul_f32 {vr(x,2)}, {vr(x,2)}, {vr(t+2*k,2)}')
    return o

def gelu_mix(groups):
    def st(g):
        u,t=g['u'],g['t']; R=range(4)
        if not isinstance(u,list): u=[u+2*k for k in R]
        s0=list(g['pre'])+[f'v_pk_mul_f32 {vr(t+2*k,2)}, {vr(u[k],2)}, {vr(u[k],2)}' for k in R]
        s0+=[f'v_pk_fma_f32 {vr(t+2*k,2)}, {vr(t+2*k,2)}, {vr(g["B"],2)}, {vr(g["A"],2)}' for k in R]
        s0+=[f'v_pk_mul_f32 {vr(t+2*k,2)}, {vr(t+2*k,2)}, {vr(u[k],2)}' for k in R]
        e=[f'v_exp_f32 v{t+k}, v{t+k}' for k in range(8)]
        m=[f'v_pk_fma_f32 {vr(t+2*k,2)}, {vr(t+2*k,2)}, {vr(g["C"],2)}, {vr(g["C"],2)}' for k in R]
        r=[f'v_rcp_f32 v{t+k}, v{t+k}' for k in range(8)]
        s2=[f'v_pk_mul_f32 {vr(u[k],2)}, {vr(u[k],2)}, {vr(t+2*k,2)}' for k in R]+list(g['post'])
        T=e[:4]+[e[4],m[0],e[5],m[1]]+[e[6],e[7],r[0],m[2],r[1],m[3]]+r[2:]
        return s0,T,s2
    S=[st(g) for g in groups]; o=list(S[0][0])
    for n in range(len(S)):
        P=(S[n-1][2] if n else [])+(S[n+1][0] if n+1<len(S) else [])
        T=S[n][1]; k=0
        for i,x in enumerate(T):
            o.append(x); w=((i+1)*len(P))//len(T)
            o+=P[k:w]; k=w
    return o+S[-1][2]

def vconst2(v, val):
    return [f'v_mov_b32 v{v}, {fhex(val)}', f'v_mov_b32 v{v+1}, {fhex(val)}']

def xrow_sum(v, t):
    return [f'v_mov_b32 v{t}, v{v}', f'v_permlane16_swap_b32 v{t}, v{v}', f'v_add_f32 v{v}, v{v}, v{t}',
            f'v_mov_b32 v{t}, v{v}', f'v_permlane32_swap_b32 v{t}, v{v}', f'v_add_f32 v{v}, v{v}, v{t}']

def touch(srdn, voff, soff, n, step, dst):
    o=[]
    for k in range(n):
        o.append((f'buffer_load_dword v{dst}, v{voff}, s[{srdn}:{srdn+3}], {soff} offen',('T',0)))
        if k+1<n: o.append((f's_add_u32 {soff}, {soff}, {step}',None))
    return o

def finish_gemm(g, U, label, scnt):
    head,bodies,tail=g.segments()
    L=head+[';;B']
    for b in bodies: L+=b+[';;B']
    L+=tail
    rep=[]
    L=fix(L,rep)
    if rep: print(f'[{label}] hazard nops in main loop:',len(rep), rep[:3])
    parts=[[]]
    for x in L:
        if x==';;B': parts.append([])
        else: parts[-1].append(x)
    return parts[0]+roll(parts[1:-1],U,label,scnt)+parts[-1]

import os
PROF=bool(int(os.environ.get('PROF','0')))
WS_PROF=128*MB
def stamp(k):
    return [f's_memrealtime s[{64+2*k}:{65+2*k}]','s_waitcnt lgkmcnt(0)'] if PROF else []
def cstamp(k):
    return [f's_memtime s[{64+2*k}:{65+2*k}]','s_waitcnt lgkmcnt(0)'] if PROF else []
def prof_store(kidx, n, drain=True):
    if not PROF: return []
    o=['s_mov_b64 exec, -1']+(['s_waitcnt vmcnt(0)'] if drain else [])+stamp(n-1)+[f's_load_dwordx2 s[60:61], s[0:1], {ARG["ws"]}','s_waitcnt lgkmcnt(0)']+srd(56,60,WS_PROF+kidx*65536,65536)
    o+=['s_lshl_b32 s60, s2, 8','s_lshl_b32 s61, s3, 6','s_add_u32 s60, s60, s61','v_mov_b32 v2, 0']
    for k in range(n): o+=[f'v_mov_b32 v3, s{64+2*k}','s_nop 0',f'buffer_store_dword v3, v2, s[56:59], s60 offen offset:{4*k}']
    return o+['s_nop 7']
```

```python
from asmlib import *

def STAMP1():
    import common
    return common.stamp(1)+common.cstamp(4)

class VM:
    def __init__(s): s.q=[]
    def issue(s, tag): s.q.append(tag)
    def wait(s, tags):
        last=-1
        for k,t in enumerate(s.q):
            if t in tags: last=k
        n=len(s.q)-1-last
        s.q=s.q[last+1:]
        assert n<=63, n
        return n

def spread(gaps, extras, skip=lambda g: False):
    idx=[g for g in range(len(gaps)) if not skip(g)]
    n=len(extras)
    for k,e in enumerate(extras):
        g=idx[min(len(idx)-1,(k*len(idx))//n)]
        gaps[g].append(e)

class Gemm:
    def __init__(s, NT, NH, KT, NS, PA, acc, xbuf, wslot, nslot, vA, vB, vm,
                 wdma, xload, NP, body0=(), zero_init=True, bodyx=None, bodypre=None):
        s.__dict__.update(locals()); s.NF=8*NH
        s.NPW,s.NPX = NP if isinstance(NP,tuple) else (NP,NP)
        assert max(s.NPW,s.NPX)<=NS-2
    def lds_tile(s, i, t):
        if s.NH==2: return ((s.vA if t<8 else s.vB)+(t&7), (i%s.NS)*16384)
        sl=i%s.NS
        return ((s.vA if sl<4 else s.vB)+t, (sl&3)*16384)
    def reads(s, u):
        i,t=divmod(u,s.NF); b,imm=s.lds_tile(i,t); w=s.wslot+(u%s.nslot)*8
        return [f'ds_read_b64_tr_b16 {vr(w+ks*4+hf*2,2)}, v{b} offset:{imm+(32*ks+16*hf)*256}' for ks in range(2) for hf in range(2)]
    def mfmas(s, u):
        i,t=divmod(u,s.NF); w=s.wslot+(u%s.nslot)*8; out=[]
        for j in range(s.NT):
            for ks in range(2):
                c = '0' if (s.zero_init and i==0 and ks==0) else s.acc(t,j)
                out.append(f'v_mfma_f32_16x16x32_bf16 {s.acc(t,j)}, {vr(w+ks*4,4)}, {s.xbuf(i,j,ks)}, {c}')
        return out
    def loads(s, k):
        return s.wdma(s.NPW+k)+s.xload(s.NPX+k)
    def emit_loads(s, lst):
        out=[]
        for txt,tag in lst:
            if tag: s.vm.issue(tag)
            out.append(txt)
        return out
    def prologue_loads(s, part='WX'):
        out=[]
        for m in range(max(s.NPW,s.NPX)):
            if 'W' in part and m<s.NPW: out+=s.emit_loads(s.wdma(m))
            if 'X' in part and m<s.NPX: out+=s.emit_loads(s.xload(m))
        return out
    def segments(s):
        NF,PA,KT=s.NF,s.PA,s.KT; U=KT*NF
        def tiles(u0,u1,extras):
            gaps=[];ms=[];last=[]
            for u in range(u0,u1):
                m=s.mfmas(u); g=[[] for _ in m]
                if u+PA<U:
                    for k,r in enumerate(s.reads(u+PA)): g[(k*len(m))//4].append((r,None))
                if u+1<U:
                    nxt=min(U,u+1+PA)-(u+2)
                    g[-1].append((f's_waitcnt lgkmcnt({4*nxt})',None))
                ms+=m; gaps+=g; last+= [False]*(len(m)-1)+[True]
            full=lambda g: last[g] or (len(ms)>=8*(u1-u0) and len(gaps[g])>0)
            if extras: spread(gaps,extras,full)
            out=[]
            for m,g in zip(ms,gaps):
                out.append(m); out+=s.emit_loads(g)
            return out
        head=[f's_waitcnt vmcnt({s.vm.wait({("W",0),("X",0)})})','s_barrier']+STAMP1()
        for u in range(PA): head+=s.reads(u)
        head.append(f's_waitcnt lgkmcnt({4*(PA-1)})')
        head+=tiles(0,NF-PA,s.loads(0))
        bodies=[]
        for i in range(KT-1):
            tg,pre = s.bodypre(i) if s.bodypre else (set(),[])
            b=[f's_waitcnt vmcnt({s.vm.wait({("W",i+1),("X",i+1)}|tg)})','s_barrier']+pre
            ex = s.loads(i+1) + (list(s.body0) if i==0 else []) + (s.bodyx(i) if s.bodyx else [])
            b+=tiles(i*NF+NF-PA,(i+1)*NF+NF-PA,ex)
            bodies.append(b)
        tail=tiles(U-PA,U,[])
        return head,bodies,tail

def roll(bodies, U, label, scnt):
    n=len(bodies); txt=['\n'.join(b) for b in bodies]
    best=(0,0)
    for a in range(n):
        e=a
        while e+U<n and txt[e]==txt[e+U]: e+=1
        g=(e-a+U)//U if e>a else 0
        if a+g*U<=n and g>best[1]: best=(a,g)
    a,g=best
    out=[]
    if g<2:
        for b in bodies: out+=b
        return out
    for b in bodies[:a]: out+=b
    out+=[f's_mov_b32 {scnt}, {g}', f'{label}:']
    grp=[]
    for b in bodies[a:a+U]: grp+=b
    k=len(grp)-1
    while not grp[k].startswith('v_mfma'): k-=1
    grp=grp[:k]+[f's_sub_u32 {scnt}, {scnt}, 1']+grp[k:]+[f's_cmp_lg_u32 {scnt}, 0',f's_cbranch_scc1 {label}']
    out+=grp
    for b in bodies[a+g*U:]: out+=b
    return out
```

```python
from common import *
vA,vB,vD,vX,WSL,ACC=64,72,80,84,96,160
acc=lambda t,j: vr(ACC+(t*2+j)*4,4)
accr=lambda t,j: ACC+(t*2+j)*4
xbuf=lambda i,j,ks: vr((i%8)*16+j*8+ks*4,4,'a')
FL_G,FL_H,FL_X,FL_C,FL_L,FL_SIZE=0,16384,16384+2048,16384+4096,16384+6144,32768

def ptrs(*pairs):
    return [f's_load_dwordx2 s[{d}:{d+1}], s[0:1], {ARG[n]}' for d,n in pairs]

def tile_ids():
    return ['s_and_b32 s36, s35, 7','s_lshr_b32 s37, s35, 3',
            's_lshr_b32 s33, s36, 1','s_lshl_b32 s33, s33, 2','s_lshr_b32 s38, s37, 2','s_add_u32 s33, s33, s38',
            's_and_b32 s34, s36, 1','s_lshl_b32 s34, s34, 2','s_and_b32 s38, s37, 3','s_add_u32 s34, s34, s38',
            's_lshl_b32 s39, s33, 3','s_lshl_b32 s36, s3, 1','s_add_u32 s39, s39, s36','s_lshl_b32 s27, s3, 12']

def signal(L, srdn, soff):
    return ['s_waitcnt vmcnt(0)','s_barrier','s_cmp_lg_u32 s3, 0',f's_cbranch_scc1 {L}',
            's_mov_b64 exec, 1','v_mov_b32 v2, 0','v_mov_b32 v3, 1',f'buffer_atomic_add v3, v2, s[{srdn}:{srdn+3}], {soff} offen sc1','s_mov_b64 exec, -1',f'{L}:']
def await_(L, srdn, voff, soff, val):
    return ['s_cmp_lg_u32 s3, 0',f's_cbranch_scc1 {L}_b',f'{L}_p:',f'buffer_load_dword v3, v{voff}, s[{srdn}:{srdn+3}], {soff} offen sc1','s_waitcnt vmcnt(0)',
            f'v_cmp_ne_u32 vcc, {val}, v3','s_nop 1',f's_cbranch_vccz {L}_b','s_sleep 1',f's_branch {L}_p',f'{L}_b:','s_barrier']

class G128:
    def __init__(s, L, KB, KT, NP, sc1x=False, PA=4, pre=None, shift=False, bodyx=None):
        s.__dict__.update(locals()); s.vm=VM()
        sc=' sc1' if sc1x else ''
        def wdma(m):
            if m>=KT: return []
            r=[(f's_add_u32 m0, s27, {(m%8)*16384}',None)]
            r+=[(f'buffer_load_dwordx4 v{vD+q}, s[12:15], s25 offen offset:{1024*q} lds',('W',m)) for q in range(4)]
            return r+[(f's_add_u32 s25, s25, {64*2048}',None)]
        def xload(m):
            if m>=KT: return []
            vx=lambda j: vX+((m//4)*2+j if shift else j)
            r=[(f'buffer_load_dwordx4 {xbuf(m,j,ks)}, v{vx(j)}, s[8:11], s24 offen offset:{1024*ks}{sc}',('X',m)) for j in range(2) for ks in range(2)]
            return r+[('s_add_u32 s24, s24, 2048',None)]
        s.ps,pl = pre() if pre else ([],[])
        s.g=Gemm(2,1,KT,8,PA,acc,xbuf,WSL,8,vA,vB,s.vm,wdma,xload,NP,body0=pl,bodyx=bodyx)
    def setup_w(s, full=True): return (wdma_offsets(vD,2048) if full else [])+['s_lshl_b32 s25, s34, 8']
    def setup_x(s):
        o=[]; A=o.append
        if not s.shift:
            A(f's_mul_i32 s24, s39, {s.KB*1024}'); A(f'v_lshlrev_b32 v{vX}, 4, v1'); A(f'v_add_u32 v{vX+1}, {s.KB*1024}, v{vX}')
        else:
            A('s_mov_b32 s24, 0')
            A('v_and_b32 v2, 15, v1'); A('s_lshl_b32 s36, s39, 4'); A('v_add_u32 v2, s36, v2'); A('v_and_b32 v3, 48, v1')
            for gi,dl in enumerate((-1,1,-2,2)):
                for j in range(2):
                    d=vX+gi*2+j
                    A(f'v_add_u32 v4, {16*j+dl}, v2' if 16*j+dl>=0 else f'v_subrev_u32 v4, {-(16*j+dl)}, v2')
                    A('v_and_b32 v5, 15, v4'); A('v_add_u32 v5, v5, v3'); A('v_lshlrev_b32 v5, 4, v5')
                    A('v_lshrrev_b32 v6, 4, v4'); A('v_min_u32 v6, 0x1000, v6')
                    A(f'v_lshl_add_u32 v{d}, v6, 15, v5')
        return o
    def early(s, part): return s.g.prologue_loads(part)
    def main(s, bases=True):
        return fix(s.ps+(tr_bases(vA,vB) if bases else []))+finish_gemm(s.g,8,s.L+'_loop','s32')+stamp(2)+cstamp(5)
    def standalone(s):
        return fix(s.setup_w()+s.setup_x()+s.early('WX'))+s.main()

def unpack8(src, dst):
    o=[]
    for k in range(4): o+=[f'v_lshlrev_b32 v{dst+2*k}, 16, v{src+k}', f'v_and_b32 v{dst+2*k+1}, 0xffff0000, v{src+k}']
    return o
def out_addr():
    return ['s_lshl_b32 s40, s39, 15','s_lshl_b32 s36, s34, 12','s_add_u32 s40, s40, s36','v_lshlrev_b32 v92, 4, v1','v_add_u32 v93, 0x8000, v92']
XS=lambda T,j: [accr(2*T,j),accr(2*T,j)+2,accr(2*T+1,j),accr(2*T+1,j)+2]

def b1_pre(srdn):
    return lambda: (['v_and_b32 v62, 15, v1','v_lshlrev_b32 v62, 2, v62','s_lshl_b32 s63, s39, 6'],
                    [(f'buffer_load_dword v{94+j}, v62, s[{srdn}:{srdn+3}], s63 offen offset:{64*j} sc1',('R',0)) for j in range(2)])
def b1_epi(sc1=False):
    e=out_addr()
    for j in range(2):
        p=2+6*j
        e+=[f'v_rcp_f32 v{p+4}, v{94+j}',f'v_mul_f32 v{p}, {fhex(GC0)}, v{94+j}',f'v_mul_f32 v{p+2}, v{94+j}, v{94+j}',f'v_mul_f32 v{p+2}, v{p+2}, v{94+j}',
            f'v_mul_f32 v{p+2}, {fhex(GC1)}, v{p+2}',f'v_mov_b32 v{p+1}, v{p}',f'v_mov_b32 v{p+3}, v{p+2}',f'v_mov_b32 v{p+5}, v{p+4}']
    sc=' sc1' if sc1 else ''
    G=[]
    for T in range(4):
        for j in range(2):
            n=T*2+j; xs=XS(T,j); d=40+4*(n&1); p=2+6*j
            G.append(dict(pre=[],u=xs,t=16+8*(n%3),A=p,B=p+2,C=p+4,
                post=[f'v_cvt_pk_bf16_f32 v{d+k}, v{x}, v{x+1}' for k,x in enumerate(xs)]+[f'buffer_store_dwordx4 {vr(d,4)}, v{92+j}, s[16:19], s40 offen offset:{1024*T}{sc}']))
    return e+gelu_mix(G)

def res_pre(srdn, sc=''):
    return lambda: (out_addr(), [(f'buffer_load_dwordx4 {vr(8+(T*2+j)*4,4)}, v{92+j}, s[{srdn}:{srdn+3}], s40 offen offset:{1024*T}{sc}',('R',0)) for T in range(4) for j in range(2)])

def b2_epi(sc1=False):
    sc=' sc1' if sc1 else ''
    e=['s_nop 7']
    for j in range(2):
        for T in range(4):
            e+=unpack8(8+(T*2+j)*4,40); xs=XS(T,j)
            e+=[f'v_pk_add_f32 {vr(x,2)}, {vr(x,2)}, {vr(40+2*k,2)}' for k,x in enumerate(xs)]
            d=48+4*(T&1)
            e+=[f'v_cvt_pk_bf16_f32 v{d+k}, v{x}, v{x+1}' for k,x in enumerate(xs)]
            e.append(f'buffer_store_dwordx4 {vr(d,4)}, v{92+j}, s[16:19], s40 offen offset:{1024*T}{sc}')
    for j in range(2):
        P=[accr(t,j)+h for t in range(8) for h in (0,2)]
        e.append(f'v_pk_add_f32 v[56:57], {vr(P[0],2)}, {vr(P[1],2)}'); e.append(f'v_pk_add_f32 v[58:59], {vr(P[2],2)}, {vr(P[3],2)}')
        for k in range(4,16): e.append(f'v_pk_add_f32 {vr(56+2*(k&1),2)}, {vr(56+2*(k&1),2)}, {vr(P[k],2)}')
        e+=['v_pk_add_f32 v[56:57], v[56:57], v[58:59]','v_add_f32 v56, v56, v57']+xrow_sum(56,58)
        e+=[f'v_mul_f32 v56, {fhex(1/128)}, v56','v_mov_b32 v57, v56']
        e+=[f'v_pk_add_f32 {vr(p,2)}, {vr(p,2)}, v[56:57] neg_lo:[0,1] neg_hi:[0,1]' for p in P]
        e.append(f'v_pk_mul_f32 v[58:59], {vr(P[0],2)}, {vr(P[0],2)}'); e.append(f'v_pk_mul_f32 v[60:61], {vr(P[1],2)}, {vr(P[1],2)}')
        for k in range(2,16): e.append(f'v_pk_fma_f32 {vr(58+2*(k&1),2)}, {vr(P[k],2)}, {vr(P[k],2)}, {vr(58+2*(k&1),2)}')
        e+=['v_pk_add_f32 v[58:59], v[58:59], v[60:61]','v_add_f32 v57, v58, v59']+xrow_sum(57,58)
        e+=['v_and_b32 v58, 15, v1',f'v_add_u32 v58, {16*j}, v58','v_lshlrev_b32 v58, 6, v58',
            's_lshl_b32 s36, s39, 10','s_lshl_b32 s37, s34, 3','s_add_u32 s36, s36, s37',
            f'buffer_store_dwordx2 v[56:57], v58, s[28:31], s36 offen{sc}']
    return e

def b4_body(L, NP, sc1x=False):
    o=G128(L,112,56,NP,sc1x=sc1x,pre=res_pre(20,' sc1' if sc1x else '')).standalone()
    e=['s_nop 7']+vconst2(2,-LOG2E)+vconst2(6,1.0)
    for T in range(4):
        for j in range(2):
            e+=unpack8(8+(T*2+j)*4,40); P=list(enumerate(XS(T,j)))
            e+=[f'v_pk_add_f32 {vr(x,2)}, {vr(x,2)}, {vr(40+2*k,2)}' for k,x in P]
            e+=[f'v_pk_mul_f32 {vr(40+2*k,2)}, {vr(x,2)}, v[2:3]' for k,x in P]
            e+=[f'v_exp_f32 v{40+k}, v{40+k}' for k in range(8)]
            e+=[f'v_pk_add_f32 {vr(40+2*k,2)}, {vr(40+2*k,2)}, v[6:7]' for k,x in P]
            e+=[f'v_rcp_f32 v{40+k}, v{40+k}' for k in range(8)]
            e+=[f'v_pk_mul_f32 {vr(x,2)}, {vr(x,2)}, {vr(40+2*k,2)}' for k,x in P]
            d=48+4*((T*2+j)&1)
            e+=[f'v_cvt_pk_bf16_f32 v{d+k}, v{x}, v{x+1}' for k,x in P]
            e.append(f'buffer_store_dwordx4 {vr(d,4)}, v{92+j}, s[16:19], s40 offen offset:{1024*T} sc1')
    e+=['s_lshl_b32 s36, s33, 3','s_add_u32 s36, s36, s34','s_lshl_b32 s36, s36, 7']+signal(L+'_sig',28,'s36')
    return o+fix(e)

def a2_body(L, NP, sc1x=False):
    def pre():
        l=[]; r=['v_lshrrev_b32 v2, 4, v1','v_and_b32 v3, 15, v1']
        for q in range(4):
            r+=[f'v_add_u32 v4, {4*q}, v2','v_xor_b32 v4, v4, v3','v_lshlrev_b32 v4, 4, v4','v_lshl_add_u32 v4, v2, 11, v4',f'v_add_u32 v{8+q}, {4*q*2048-1024*q}, v4']
        r+=['s_lshl_b32 s41, s39, 15','s_lshl_b32 s36, s34, 8','s_add_u32 s41, s41, s36','s_add_u32 s42, s41, 0x8000',
            's_lshl_b32 s43, s3, 13','s_add_u32 s43, s43, 0x20000']
        for h in range(2):
            l.append((f's_add_u32 m0, s43, {4096*h}',None))
            l+=[(f'buffer_load_dwordx4 v{8+q}, s[20:23], s{41+h} offen offset:{1024*q} lds',('R',0)) for q in range(4)]
        return r,l
    o=G128(L,128,64,NP,sc1x=sc1x,pre=pre).standalone()
    e=out_addr()+['s_lshl_b32 s36, s33, 3','s_add_u32 s36, s36, s34','s_lshl_b32 s36, s36, 7','v_mov_b32 v2, 0',
       f'{L}_poll:','buffer_load_dword v3, v2, s[28:31], s36 offen sc1','s_waitcnt vmcnt(0)','v_readfirstlane_b32 s37, v3','s_nop 1','s_cmp_eq_u32 s37, 1',
       f's_cbranch_scc1 {L}_go','s_sleep 2',f's_branch {L}_poll',f'{L}_go:']+stamp(3)
    for j in range(2):
        for T in range(4): e.append(f'buffer_load_dwordx4 {vr(96+(j*4+T)*4,4)}, v{92+j}, s[44:47], s40 offen offset:{1024*T} sc1')
    e+=['v_and_b32 v2, 15, v1','v_lshrrev_b32 v3, 5, v1','v_bfe_u32 v4, v1, 4, 1','v_lshlrev_b32 v4, 3, v4','v_lshl_add_u32 v4, v2, 8, v4','v_add_u32 v4, s43, v4']
    for t in range(8): e+=[f'v_add_u32 v5, {2*t}, v3','v_xor_b32 v5, v5, v2',f'v_lshl_add_u32 v{64+t}, v5, 4, v4']
    for j in range(2):
        for t in range(8): e.append(f'ds_read_b64 {vr(128+(j*8+t)*2,2)}, v{64+t} offset:{4096*j}')
    e+=['v_lshlrev_b32 v12, 4, v1','v_add_u32 v12, s43, v12']
    for j in range(2):
        for T in range(4):
            k=j*4+T; e.append(f's_waitcnt vmcnt({7-k+(4 if j else 0)})'+(' lgkmcnt(0)' if k==0 else ''))
            e+=unpack8(96+k*4,40)
            for h in range(2):
                xr=128+(j*8+2*T+h)*2
                e+=[f'v_lshlrev_b32 v{48+4*h}, 16, v{xr}',f'v_and_b32 v{49+4*h}, 0xffff0000, v{xr}',f'v_lshlrev_b32 v{50+4*h}, 16, v{xr+1}',f'v_and_b32 v{51+4*h}, 0xffff0000, v{xr+1}']
            P=list(enumerate(XS(T,j)))
            e+=[f'v_pk_fma_f32 {vr(x,2)}, {vr(x,2)}, {vr(40+2*k,2)}, {vr(48+2*k,2)}' for k,x in P]
            d=56+4*(T&1)
            e+=[f'v_cvt_pk_bf16_f32 v{d+k}, v{x}, v{x+1}' for k,x in P]
            for h in range(2): e.append(f'ds_write_b64 v{64+2*T+h}, {vr(d+2*h,2)} offset:{4096*j}')
        e.append('s_waitcnt lgkmcnt(0)')
        for q in range(4): e.append(f'ds_read_b128 {vr(224+(j*4+q)*4,4)}, v12 offset:{4096*j+1024*q}')
        for q in range(4):
            e+=[f's_waitcnt lgkmcnt({3-q})',f'buffer_store_dwordx4 {vr(224+(j*4+q)*4,4)}, v{8+q}, s[16:19], s{41+j} offen offset:{1024*q}']
    return o+fix(e)

def f2_kernel(name='f2_kernel', NP=4):
    o=kernel_header(name)+['s_cmp_ge_u32 s2, 256','s_cbranch_scc1 F2_end']+stamp(0)+ptrs((4,'ws'),(6,'w4'),(48,'wo'),(50,'x'),(52,'out'))+lane_setup()
    o+=['s_and_b32 s35, s2, 127']+tile_ids()+['s_waitcnt lgkmcnt(0)']+srd(28,4,WS_FL,FL_SIZE)
    o+=['s_cmp_ge_u32 s2, 128','s_cbranch_scc1 F2_a2']
    o+=srd(8,4,WS_H3,14*MB)+srd(12,6,0,7*MB)+srd(16,4,WS_G,4*MB)+srd(20,4,WS_X1,4*MB)
    o=fix(o)+b4_body('B4',NP)+prof_store(5,8)+['s_endpgm','F2_a2:']
    o+=fix(srd(8,4,WS_O,16*MB)+srd(12,48,0,8*MB)+srd(16,52,0,4*MB)+srd(20,50,0,4*MB)+srd(44,4,WS_G,4*MB))
    return o+a2_body('A2',NP)+prof_store(5,8)+['F2_end:','s_endpgm'], kernel_desc(name,384,256), (256,256,163840)
```

```python
from common import *
from k_g128 import ptrs, signal, await_, FL_G, FL_H, FL_X, FL_C, FL_SIZE
vA,vB,vD,vX,WSL,XB=8,16,24,28,32,128
quad=lambda t,j: (t*4+j)*4
acc=lambda t,j: vr(quad(t,j),4,'a')
xbuf=lambda i,j,ks: vr(XB+(i%4)*32+j*8+ks*4,4)
EPS=1e-5

class G256:
    def __init__(s, L, ldw, sc1x=False, extra=lambda m: [], body0=(), setup=(), vDe=vD, bodyx=None, bodypre=None):
        s.__dict__.update(locals()); s.vm=VM(); KT=16
        sc=' sc1' if sc1x else ''
        def wdma(m):
            if m>=KT: return extra(m-KT)
            r=[]; vd=vDe if m<2 else vD
            for h in range(2):
                r.append((f's_add_u32 m0, s27, {(m%4)*16384+h*65536}',None))
                r+=[(f'buffer_load_dwordx4 v{vd+q}, s[12:15], s{25+h} offen offset:{1024*q} lds',('W',m)) for q in range(4)]
                r.append((f's_add_u32 s{25+h}, s{25+h}, {64*ldw}',None))
            return r
        def xload(m):
            if m>=KT: return []
            r=[(f'buffer_load_dwordx4 {xbuf(m,j,ks)}, v{vX+j}, s[8:11], s24 offen offset:{1024*ks}{sc}',('X',m)) for j in range(4) for ks in range(2)]
            return r+[('s_add_u32 s24, s24, 2048',None)]
        s.g=Gemm(4,2,KT,4,3,acc,xbuf,WSL,4,vA,vB,s.vm,wdma,xload,2,body0=list(body0),bodyx=bodyx,bodypre=bodypre)
    def setup_w(s, sc='s34'): return wdma_offsets(s.vDe,s.ldw,t0=s.vDe+4 if s.vDe!=vD else 2)+[f's_lshl_b32 s25, {sc}, 9','s_add_u32 s26, s25, 256','s_lshl_b32 s27, s3, 12']
    def setup_x(s):
        o=['s_lshl_b32 s39, s33, 4','s_lshl_b32 s36, s3, 2','s_add_u32 s39, s39, s36','s_lshl_b32 s24, s39, 15',f'v_lshlrev_b32 v{vX}, 4, v1']
        o+=[f'v_add_u32 v{vX+j}, {j*32768}, v{vX}' for j in range(1,4)]
        if s.vDe!=vD: o+=[f'v_mov_b32 v{vD+q}, v{s.vDe+q}' for q in range(4)]
        return o
    def early(s, part): return s.g.prologue_loads(part)
    def main(s): return fix(list(s.setup)+tr_bases(vA,vB))+finish_gemm(s.g,4,s.L+'_loop','s32')+stamp(2)+cstamp(5)
    def standalone(s): return fix(s.setup_w()+s.setup_x()+s.early('WX'))+s.main()

def b3_stats():
    e=[]
    for j in range(4):
        s=96+4*j; p=64+8*j
        e+=[f'v_add_f32 v2, v{s}, v{s+2}']+xrow_sum(2,3)+[f'v_mul_f32 v2, {fhex(0.125)}, v2',
            f'v_sub_f32 v3, v{s}, v2',f'v_sub_f32 v4, v{s+2}, v2','v_mul_f32 v3, v3, v3','v_fmac_f32 v3, v4, v4',
            f'v_add_f32 v4, v{s+1}, v{s+3}',f'v_fmac_f32 v4, {fhex(128.0)}, v3']+xrow_sum(4,3)
        e+=[f'v_mov_b32 v5, {fhex(EPS)}',f'v_fmac_f32 v5, {fhex(1/1024)}, v4','v_rsq_f32 v6, v5',f'v_sqrt_f32 v{p+6}, v5',
            f'v_sub_f32 v{p}, 0, v2',f'v_mov_b32 v{p+1}, v{p}',
            f'v_mul_f32 v{p+2}, {fhex(GC0)}, v6',f'v_mov_b32 v{p+3}, v{p+2}',
            'v_mul_f32 v7, v6, v6','v_mul_f32 v7, v7, v6',f'v_mul_f32 v{p+4}, {fhex(GC1)}, v7',f'v_mov_b32 v{p+5}, v{p+4}',f'v_mov_b32 v{p+7}, v{p+6}']
    return e

def b3_gemm(L, sc1x=False, vDe=vD):
    sc=' sc1' if sc1x else ''
    setup=['v_and_b32 v2, 15, v1','v_lshrrev_b32 v3, 4, v1','v_lshlrev_b32 v2, 6, v2','v_lshl_add_u32 v112, v3, 4, v2','s_lshl_b32 s40, s39, 10',
           'v_lshlrev_b32 v113, 4, v3','s_lshl_b32 s41, s34, 10','v_mov_b32 v114, 0',f's_mov_b32 s42, {FL_C}']
    b0=[(f'buffer_load_dwordx4 {vr(96+4*j,4)}, v112, s[20:23], s40 offen offset:{1024*j}{sc}',('R',0)) for j in range(4)]
    st=[(x,None) for x in b3_stats()]; h=len(st)//2
    def bodyx(i):
        if i==12: return [('buffer_load_dword v115, v114, s[44:47], s42 offen sc1',('F',0))]
        if i==13: return st[:h]
        if i==14: return st[h:]+[(f'buffer_load_dwordx4 {vr(128+4*t,4)}, v113, s[28:31], s41 offen offset:{64*t} sc1',('C',0)) for t in range(16)]
        return []
    def bodypre(i):
        if i!=14: return set(),[]
        return {('F',0)},['v_cmp_ne_u32 vcc, 16, v115','s_nop 1',f's_cbranch_vccnz {L}_cswait',f'{L}_csok:']
    return G256(L,7168,sc1x=sc1x,body0=b0,setup=setup,vDe=vDe,bodyx=bodyx,bodypre=bodypre)
def b3_cswait(L):
    return [f'{L}_cswait:','s_sleep 2','buffer_load_dword v115, v114, s[44:47], s42 offen sc1','s_waitcnt vmcnt(0)','v_cmp_ne_u32 vcc, 16, v115','s_nop 1',
            f's_cbranch_vccnz {L}_cswait',f's_branch {L}_csok']

def b3_epi(L, sc1=False):
    e=[f's_mul_i32 s24, s39, {112*1024}','s_lshl_b32 s36, s34, 13','s_add_u32 s24, s24, s36','s_add_u32 s25, s24, 4096',f'v_lshlrev_b32 v{vX}, 4, v1']
    for j in range(1,4): e.append(f'v_add_u32 v{vX+j}, {j*112*1024}, v{vX}')
    e+=['s_waitcnt vmcnt(0)','s_nop 3']
    st=' sc1' if sc1 else ''
    G=[]
    for T in range(8):
        for j in range(4):
            n=T*4+j; p=64+8*j; u=192+16*(n%3); d=240+4*(n&1)
            pre=[f'v_accvgpr_read_b32 v{u+k}, a{quad(2*T+(k>>2),j)+(k&3)}' for k in range(8)]
            pre+=[f'v_pk_fma_f32 {vr(u+2*k,2)}, {vr(128+8*T+2*k,2)}, {vr(p,2)}, {vr(u+2*k,2)}' for k in range(4)]
            post=[f'v_cvt_pk_bf16_f32 v{d+k}, v{u+2*k}, v{u+2*k+1}' for k in range(4)]
            post.append(f'buffer_store_dwordx4 {vr(d,4)}, v{vX+j}, s[16:19], s{24+(T>>2)} offen offset:{1024*(T&3)}{st}')
            G.append(dict(pre=pre,u=u,t=u+8,A=p+2,B=p+4,C=p+6,post=post))
    return e+gelu_mix(G)

def b3_ids():
    return ['s_and_b32 s36, s35, 7','s_lshr_b32 s37, s35, 3','s_lshr_b32 s50, s36, 1','s_lshl_b32 s50, s50, 1',
            's_cmp_ge_u32 s37, 7','s_cselect_b32 s38, 1, 0','s_add_u32 s50, s50, s38','s_mul_i32 s38, s38, 7','s_sub_u32 s37, s37, s38',
            's_and_b32 s51, s36, 1','s_mul_i32 s51, s51, 7','s_add_u32 s51, s51, s37']

QS=LOG2E*128**-0.5
vKB,vKD,vVD=8,24,28
vKDp,vVDp=64,68
NEGM,LACC,ONES,KSL,VSL,SB=32,48,12,64,96,128
Qf=lambda j,T: vr(quad(2*T,j),4,'a')
Of=lambda dt,j: vr(quad(2*dt+1,j),4,'a')
Sq=lambda b,kt,j: SB+(b&1)*64+(kt*4+j)*4

def kv_dma(kind, b, vk, vv):
    if kind=='K':
        r=[(f's_add_u32 m0, s27, {(b%4)*16384}',None)]+[(f'buffer_load_dwordx4 v{vk+q}, s[20:23], s41 offen offset:{1024*q} lds',('K',b)) for q in range(4)]
        return r+[('s_add_u32 s41, s41, 0x4000',None),('s_and_b32 s41, s41, 0x1ffff',None)]
    r=[(f's_add_u32 m0, s27, {(b%4)*16384+65536}',None)]+[(f'buffer_load_dwordx4 v{vv+(q&1)}, s[28:31], s42 offen offset:{1024*q} lds',('V',b)) for q in range(4)]
    return r+[('s_add_u32 s42, s42, 0x4000',None),('s_and_b32 s42, s42, 0x1ffff',None)]

def kreads(b,kt): return [f'ds_read_b128 {vr(KSL+(kt&1)*16+4*ks,4)}, v{vKB+ks} offset:{(b%4)*16384+kt*4096}' for ks in range(4)]
def vreads(b,dt): return [f'ds_read_b64_tr_b16 {vr(VSL+(dt&3)*8+4*u+2*hf,2)}, v{vB+dt} offset:{(b%4)*16384+(32*u+16*hf)*256}' for u in range(2) for hf in range(2)]
def smf(b,kt,j,ks,raw=False):
    d=vr(Sq(b,kt,j),4); c=d if ks else ('0' if raw else vr(NEGM+4*j,4))
    return f'v_mfma_f32_16x16x32_bf16 {d}, {vr(KSL+(kt&1)*16+4*ks,4)}, {Qf(j,ks)}, {c}'

def attn_pass(vm, tch=None):
    phases=[('S',0),('S',1)]
    for b in range(2,8): phases+=[('V',b-2),('S',b)]
    phases+=[('V',6),('V',7)]
    G=[]
    for k,b in phases:
        if k=='S':
            for kt in range(4):
                if (b,kt)==(0,0): continue
                G.append(dict(k=k,b=b,i=kt,m=[smf(b,kt,j,ks) for j in range(4) for ks in range(4)],r=kreads(b,kt)))
        else:
            for dt in range(8):
                m=[]
                for j in range(4):
                    for u in range(2):
                        c='0' if (b==0 and u==0) else Of(dt,j)
                        m.append(f'v_mfma_f32_16x16x32_bf16 {Of(dt,j)}, {vr(VSL+(dt&3)*8+4*u,4)}, {vr(Sq(b,2*u,j),4)}, {c}')
                if dt&1:
                    j=dt>>1; l=vr(LACC+4*j,4)
                    for u in range(2): m.append(f'v_mfma_f32_16x16x32_bf16 {l}, {vr(ONES,4)}, {vr(Sq(b,2*u,j),4)}, {"0" if (b==0 and u==0) else l}')
                G.append(dict(k=k,b=b,i=dt,m=m,r=vreads(b,dt)))
    n=0
    for g in G: g['g0']=n; n+=len(g['m'])
    NG=n; gaps=[[] for _ in range(NG)]; load=[0]*NG; hascvt=[False]*NG
    host={}
    for x,g in enumerate(G):
        if x==0: continue
        h=x-1
        if g['k']=='V' and G[x-1]['k']=='V' : h=x-2
        if g['k']=='S' and G[x-1]['k']=='V': h=x-2
        host.setdefault(h,[]).append(x)
    order=[]
    for h,xs in sorted(host.items()):
        g=G[h]; L=len(g['m']); rs=[(x,r) for x in xs for r in G[x]['r']]
        step=2 if len(rs)*2<=L else 1
        for k,(x,r) in enumerate(rs):
            gp=g['g0']+k*step; gaps[gp].append((r,None)); load[gp]+=1; order.append((gp,x))
    issue={1:['V2'],2:['K4','K5','V3'],3:['K6','V4'],4:['K7','V5'],5:['K8','V6'],6:['K9','V7'],7:['V8'],8:[]}
    bar={}
    for x,g in enumerate(G):
        if g['i']==0 and x>0 and (g['k']=='S' or g['b']==7):
            bb=g['b'] if g['k']=='S' else 8
            bar[min(gp for gp,xx in order if xx==x)]=bb
    for x,g in enumerate(G):
        gp=g['g0']-2
        if x==0: continue
        lastr=max(k for k,(q,xx) in enumerate(order) if xx==x)
        later=sum(1 for k,(q,xx) in enumerate(order) if k>lastr and q<=gp)
        assert order[lastr][0]<=gp and later<=15
        gaps[gp].append((f's_waitcnt lgkmcnt({later})',None)); load[gp]+=1
    def put(items, g0):
        gp=g0
        for it in items:
            while load[gp]>=2 or (gp&1): gp+=1
            gaps[gp].append(it); load[gp]+=1; gp+=2
    put(kv_dma('K',2,vKD,vVD)+kv_dma('K',3,vKD,vVD)+kv_dma('V',1,vKD,vVD),0)
    for gp,bb in sorted(bar.items()):
        items=[]
        for t in issue[bb]: items+=kv_dma(t[0],int(t[1]),vKD,vVD)
        if tch: items+=tch(bb)
        put(items,gp+2)
    sg={(g['b'],g['i']):g['g0'] for g in G if g['k']=='S'}; vg={g['b']:g['g0'] for g in G if g['k']=='V' and g['i']==0}
    cur=0; curc=0; forced=0
    for b in range(8):
        dead=vg[b]-2
        ex=[]
        for kt in range(4):
            for j in range(4):
                q=Sq(b,kt,j); rdy=(sg[(b,kt)]+4*j+3+8) if (b,kt)!=(0,0) else 2*j+2
                ex+=[(f'v_exp_f32 v{q+i}, v{q+i}',rdy,kt,j) for i in range(4)]
        if b==0:
            for j in range(4):
                for i in range(4):
                    q=Sq(0,0,j); gp=2*j+(i>>1); gaps[gp].insert(0,(f'v_add_f32 v{q+i}, v{q+i}, v{NEGM+4*j}',None)); load[gp]+=1
        w0=max(cur,ex[0][1]); w1=dead-8 if b in(0,7) else dead-32
        done={}
        for k,(txt,rdy,kt,j) in enumerate(ex):
            gp=max(cur,rdy,w0+(k*(w1-w0))//len(ex))
            while gp<dead-4 and load[gp]!=0: gp+=1
            if gp>=dead-4: gp=max(cur,dead-4); forced+=1
            gaps[gp].append((txt,None)); load[gp]+=2; cur=gp; done[(kt,j)]=gp
        for u in range(2):
            for j in range(4):
                p=Sq(b,2*u,j); q=Sq(b,2*u+1,j)
                for txt in (f'v_cvt_pk_bf16_f32 v{p}, v{p}, v{p+1}',f'v_cvt_pk_bf16_f32 v{p+1}, v{p+2}, v{p+3}',
                            f'v_cvt_pk_bf16_f32 v{p+2}, v{q}, v{q+1}',f'v_cvt_pk_bf16_f32 v{p+3}, v{q+2}, v{q+3}'):
                    gp=max(curc,done[(2*u+1,j)]+1)
                    while gp<dead and (load[gp]>1 or hascvt[gp] or ((gp&1) and gp<dead-12)): gp+=1
                    if gp>=dead: gp=dead; forced+=1
                    gaps[gp].append((txt,None)); load[gp]+=1; hascvt[gp]=True; curc=gp
    print('attn: gaps',NG,'forced',forced,'overloaded',sum(l>2 for l in load),'empty',sum(l==0 for l in load))
    out=[]; ms=[m for g in G for m in g['m']]
    for k in range(NG):
        out.append(ms[k])
        if k in bar:
            bb=bar[k]; out+=[f's_waitcnt vmcnt({vm.wait({("K",bb),("V",bb-1)})})','s_barrier']
        for txt,tag in gaps[k]:
            if tag: vm.issue(tag)
            out.append(txt)
    return out

def a1_gemm(L, bodyx=None, sc1x=False):
    setup=['v_lshrrev_b32 v2, 4, v1','v_and_b32 v3, 15, v1','v_lshlrev_b32 v4, 8, v2','v_add_u32 v4, s27, v4','s_mov_b32 s41, 0','s_mov_b32 s42, 0']
    for q in range(4): setup+=[f'v_add_u32 v5, {4*q}, v2','v_xor_b32 v5, v5, v3',f'v_lshl_add_u32 v{vKDp+q}, v5, 4, v4']
    for q in range(2): setup+=[f'v_add_u32 v5, {4*q}, v2','v_lshlrev_b32 v5, 1, v5','v_xor_b32 v5, v5, v3',f'v_lshl_add_u32 v{vVDp+q}, v5, 4, v4']
    extra=lambda m: kv_dma('K',0,vKDp,vVDp)+kv_dma('V',0,vKDp,vVDp) if m==0 else kv_dma('K',1,vKDp,vVDp)
    return G256(L,8192,extra=extra,setup=setup,bodyx=bodyx,sc1x=sc1x)

def a1_rest(L, G, sc1=False, tch=None):
    vm=G.vm
    e=['s_nop 7']+[f'v_mov_b32 v{vKD+q}, v{vKDp+q}' for q in range(4)]+[f'v_mov_b32 v{vVD+q}, v{vVDp+q}' for q in range(2)]
    e+=['v_and_b32 v2, 15, v1','v_bfe_u32 v3, v1, 4, 1','v_bfe_u32 v4, v1, 5, 1','v_lshl_add_u32 v3, v3, 1, v4','v_lshlrev_b32 v4, 8, v2']
    for ks in range(4): e+=[f'v_add_u32 v5, {4*ks}, v3','v_xor_b32 v5, v5, v2',f'v_lshl_add_u32 v{vKB+ks}, v5, 4, v4']
    e+=[f'v_mov_b32 v{ONES+k}, 0x3f803f80' for k in range(4)]+vconst2(2,QS)
    n=0
    for h in range(2):
        for T in range(4):
            for j in range(4):
                u=128+8*(n&3); d=160+4*(n&3); n+=1
                e+=[f'v_accvgpr_read_b32 v{u+k}, a{quad(8*h+2*T+(k>>2),j)+(k&3)}' for k in range(8)]
                e+=[f'v_pk_mul_f32 {vr(u+2*k,2)}, {vr(u+2*k,2)}, v[2:3]' for k in range(4)]
                e+=[f'v_cvt_pk_bf16_f32 v{d+k}, v{u+2*k}, v{u+2*k+1}' for k in range(4)]
                e+=['s_nop 0',f'v_permlane16_swap_b32 v{d}, v{d+2}',f'v_permlane16_swap_b32 v{d+1}, v{d+3}']
                e+=[f'v_accvgpr_write_b32 a{quad(8*h+2*T,j)+k}, v{d+k}' for k in range(4)]
    e+=['s_lshl_b32 s43, s39, 17','s_lshl_b32 s36, s34, 13','s_add_u32 s43, s43, s36','v_lshlrev_b32 v30, 4, v1',
        's_mov_b32 s44, 0','s_mov_b32 s45, 0','s_lshl_b32 s36, s3, 2','s_add_u32 s36, s36, 0x20000','v_mov_b32 v31, s36',
        f's_waitcnt vmcnt({vm.wait({("K",0)})})','s_barrier']+stamp(3)+[f'{L}_pass:']
    e+=kreads(0,0)+kreads(0,1)+['s_waitcnt lgkmcnt(4)']+[smf(0,0,j,ks,raw=True) for j in range(4) for ks in range(4)]
    e+=['s_cmp_lg_u32 s45, 0',f's_cbranch_scc1 {L}_havemax','s_nop 4']
    J=range(4)
    e+=[f'v_max3_f32 v{NEGM+4*j}, v{Sq(0,0,j)}, v{Sq(0,0,j)+1}, v{Sq(0,0,j)+2}' for j in J]
    e+=[f'v_max_f32 v{NEGM+4*j}, v{NEGM+4*j}, v{Sq(0,0,j)+3}' for j in J]
    def xmax():
        r=[]
        for sw in ('16','32'):
            r+=[f'v_mov_b32 v{NEGM+4*j+1}, v{NEGM+4*j}' for j in J]
            r+=[f'v_permlane{sw}_swap_b32 v{NEGM+4*j+1}, v{NEGM+4*j}' for j in J]
            r+=[f'v_max_f32 v{NEGM+4*j}, v{NEGM+4*j}, v{NEGM+4*j+1}' for j in J]
        r+=[f'v_sub_f32 v{NEGM+4*j}, 0, v{NEGM+4*j}' for j in J]
        r+=[f'v_mov_b32 v{NEGM+4*j+k}, v{NEGM+4*j}' for j in J for k in (1,2,3)]
        return r
    e+=xmax()+[f'{L}_havemax:','s_waitcnt lgkmcnt(0)','s_nop 4']
    e+=attn_pass(vm,tch)
    e+=stamp(6)+['s_nop 7',f's_mov_b32 s36, {fhex(2.0**40)}']
    e+=[f'v_cmp_nlt_f32 s[46:47], v{LACC}, s36']+sum([[f'v_cmp_nlt_f32 vcc, v{LACC+4*j}, s36','s_or_b64 s[46:47], s[46:47], vcc'] for j in (1,2,3)],[])
    e+=['s_cmp_lg_u64 s[46:47], 0','s_cselect_b32 s36, 1, 0','v_mov_b32 v2, s36','ds_write_b32 v31, v2']
    e+=[f'v_rcp_f32 v{LACC+4*j}, v{LACC+4*j}' for j in J]+[f'v_mov_b32 v{LACC+4*j+1}, v{LACC+4*j}' for j in J]
    st=' sc1' if sc1 else ''
    n=0
    for j in J:
        for T in range(4):
            u=128+8*(n&3); d=160+4*(n&3); n+=1
            e+=[f'v_accvgpr_read_b32 v{u+k}, a{quad(2*(2*T+(k>>2))+1,j)+(k&3)}' for k in range(8)]
            e+=[f'v_pk_mul_f32 {vr(u+2*k,2)}, {vr(u+2*k,2)}, {vr(LACC+4*j,2)}' for k in range(4)]
            e+=[f'v_cvt_pk_bf16_f32 v{d+k}, v{u+2*k}, v{u+2*k+1}' for k in range(4)]
            e.append(f'buffer_store_dwordx4 {vr(d,4)}, v30, s[16:19], s43 offen offset:{1024*T}{st}'); vm.issue(('O',0))
        e.append('s_add_u32 s43, s43, 0x20000')
    e+=['s_sub_u32 s43, s43, 0x80000',f's_waitcnt vmcnt({vm.wait({("K",8)})}) lgkmcnt(0)','s_barrier','v_mov_b32 v2, 0x20000','ds_read_b128 v[192:195], v2','s_waitcnt lgkmcnt(0)',
        'v_or3_b32 v4, v192, v193, v194','v_or_b32 v4, v4, v195','v_readfirstlane_b32 s36, v4','s_andn2_b32 s36, s36, s45','s_cmp_lg_u32 s36, 0',f's_cbranch_scc1 {L}_slow',
        's_cmp_lg_u32 s44, 0',f's_cbranch_scc1 {L}_done','s_mov_b32 s44, 1','s_mov_b32 s45, 0','s_add_u32 s43, s43, 4096']
    e+=[f'v_accvgpr_mov_b32 a{quad(2*T,j)+k}, a{quad(8+2*T,j)+k}' for T in range(4) for j in J for k in range(4)]
    e+=[f's_branch {L}_pass']
    e+=[f'{L}_slow:','s_waitcnt vmcnt(0)','s_barrier','s_mov_b32 s45, 1','s_mov_b32 s41, 0','s_mov_b32 s42, 0','s_mov_b32 s32, 8']
    e+=[f'v_mov_b32 v{NEGM+4*j}, 0xff800000' for j in J]+[f'{L}_mx:']
    e+=[t for t,_ in kv_dma('K',0,vKD,vVD)]+['s_waitcnt vmcnt(0)','s_barrier']
    for kt in range(4):
        e+=kreads(0,kt)+['s_waitcnt lgkmcnt(0)']+[smf(0,kt,j,ks,raw=True) for j in J for ks in range(4)]
    e+=['s_nop 7']
    for kt in range(4):
        for j in J:
            q=Sq(0,kt,j); e+=[f'v_max3_f32 v{NEGM+4*j}, v{NEGM+4*j}, v{q}, v{q+1}',f'v_max3_f32 v{NEGM+4*j}, v{NEGM+4*j}, v{q+2}, v{q+3}']
    e+=['s_barrier','s_sub_u32 s32, s32, 1','s_cmp_lg_u32 s32, 0',f's_cbranch_scc1 {L}_mx']+xmax()
    e+=[t for t,_ in kv_dma('K',0,vKD,vVD)+kv_dma('V',0,vKD,vVD)+kv_dma('K',1,vKD,vVD)]+['s_waitcnt vmcnt(0)','s_barrier',f's_branch {L}_pass',f'{L}_done:']
    rep=[]; e=fix(e,rep); print('a1 nops',len(rep))
    return e

def a1_ids():
    return ['s_and_b32 s36, s35, 7','s_lshr_b32 s38, s35, 3','s_lshr_b32 s37, s36, 1','s_lshl_b32 s34, s37, 2','s_and_b32 s33, s38, 3','s_add_u32 s34, s34, s33',
            's_and_b32 s33, s36, 1','s_lshl_b32 s33, s33, 2','s_lshr_b32 s38, s38, 2','s_add_u32 s33, s33, s38']
def a1_srds():
    o=srd(8,4,WS_XN,4*MB)+srd(12,6,0,8*MB)+srd(16,4,WS_O,16*MB)
    o+=['s_lshl_b32 s37, s37, 19','s_add_u32 s37, s37, 0x60000']
    for d,p in ((20,48),(28,50)):
        o+=[f's_add_u32 s{d}, s{p}, s37',f's_addc_u32 s{d+1}, s{p+1}, 0',f's_mov_b32 s{d+2}, 0x20000',f's_mov_b32 s{d+3}, 0x20000']
    return o
```

```python
from common import *
import k_g128 as S, k_g256 as B
from k_g128 import ptrs, signal, await_, FL_H, FL_X, FL_C, FL_L, FL_SIZE
EPS=1e-5

def ln_loads(L):
    o=['v_and_b32 v146, 7, v1','s_lshl_b32 s36, s2, 3','v_add_u32 v147, s36, v146','v_lshlrev_b32 v148, 11, v147',
       'v_bfe_u32 v149, v1, 4, 1','v_bfe_u32 v150, v1, 5, 1','v_lshl_add_u32 v149, v149, 1, v150','v_bfe_u32 v150, v1, 3, 1','v_lshl_add_u32 v149, v150, 2, v149',
       'v_lshl_add_u32 v149, v149, 4, v148','s_lshl_b32 s36, s3, 9','s_lshl_b32 s37, s3, 4','s_add_u32 s37, s37, s2','s_waitcnt lgkmcnt(0)']+srd(84,80,0,4*MB)+srd(44,4,WS_FL,FL_SIZE)+srd(88,82,0,256)
    ld=[f'buffer_load_dwordx4 {vr(128+4*e,4)}, v149, s[84:87], s36 offen offset:{128*e}' for e in range(4)]+['buffer_load_ushort v144, v148, s[84:87], 0 offen']
    o+=['s_cmp_lt_u32 s37, 16',f's_cbranch_scc1 {L}_z']+ld+[f's_branch {L}_zd',f'{L}_z:']
    o+=[f'v_mov_b32 v{152+k}, 0' for k in range(4)]+['v_lshlrev_b32 v156, 5, v1','s_lshl_b32 s37, s2, 11',
        'buffer_store_dwordx4 v[152:155], v156, s[44:47], s37 offen sc1','buffer_store_dwordx4 v[152:155], v156, s[44:47], s37 offen offset:16 sc1']+ld
    o+=['v_lshlrev_b32 v156, 6, v1','v_mov_b32 v157, 1','s_waitcnt vmcnt(5)','s_mov_b64 exec, 15','buffer_store_byte v157, v156, s[88:91], s2 offen sc1','s_mov_b64 exec, -1',f'{L}_zd:']
    return o
def ln_compute():
    o=[]; A=o.append; X=o.extend
    X(srd(84,4,WS_XN,4*MB)); X(srd(92,4,WS_R2,8192))
    X(['v_and_b32 v151, 48, v1','s_and_b32 s36, s2, 1','s_lshl_b32 s36, s36, 3','v_add3_u32 v151, v151, s36, v146','v_lshlrev_b32 v151, 4, v151','v_lshl_add_u32 v151, v150, 10, v151',
       's_lshr_b32 s37, s2, 1','s_lshl_b32 s37, s37, 15','s_lshl_b32 s36, s3, 13','s_add_u32 s37, s37, s36','s_add_u32 s38, s37, 4096','v_lshlrev_b32 v147, 2, v147'])
    X([f'v_mov_b32 v{152+k}, 0' for k in range(4)])
    A('s_and_b32 s36, s2, 3'); A('s_lshl_b32 s36, s36, 6'); A('v_mov_b32 v158, s36')
    A('s_waitcnt vmcnt(0)'); X(stamp(1))
    A('v_lshlrev_b32 v144, 16, v144'); A('v_mov_b32 v145, v144')
    for f in range(4):
        b=128+4*f; A(f'v_permlane16_swap_b32 v{b}, v{b+2}'); A(f'v_permlane16_swap_b32 v{b+1}, v{b+3}')
    for r in range(16): A(f'v_lshlrev_b32 v{160+2*r}, 16, v{128+r}'); A(f'v_and_b32 v{161+2*r}, 0xffff0000, v{128+r}')
    for r in range(16): A(f'v_pk_add_f32 {vr(160+2*r,2)}, {vr(160+2*r,2)}, v[144:145] neg_lo:[0,1] neg_hi:[0,1]')
    for r in range(16):
        A(f'v_pk_add_f32 v[152:153], v[152:153], {vr(160+2*r,2)}'); A(f'v_pk_fma_f32 v[154:155], {vr(160+2*r,2)}, {vr(160+2*r,2)}, v[154:155]')
    A('v_add_f32 v152, v152, v153'); A('v_add_f32 v153, v154, v155')
    X(xrow_sum(152,154)); X(xrow_sum(153,155))
    A('v_add_f32 v152, v152, v152 row_ror:8 row_mask:0xf bank_mask:0xf'); A('v_add_f32 v153, v153, v153 row_ror:8 row_mask:0xf bank_mask:0xf')
    X(['s_lshl_b32 s36, s3, 3','v_lshlrev_b32 v154, 5, v146','v_add_u32 v154, 0x20100, v154','v_add_u32 v155, s36, v154',
       'ds_write_b64 v155, v[152:153]','s_waitcnt lgkmcnt(0)','s_barrier','ds_read_b128 v[128:131], v154','ds_read_b128 v[132:135], v154 offset:16','s_waitcnt lgkmcnt(0)'])
    for k in range(1,4): A(f'v_pk_add_f32 v[128:129], v[128:129], {vr(128+2*k,2)}')
    A(f'v_mul_f32 v128, {fhex(1/1024)}, v128'); A(f'v_mul_f32 v129, {fhex(1/1024)}, v129')
    A('v_fma_f32 v129, -v128, v128, v129'); A('v_max_f32 v129, 0, v129')
    A(f'v_add_f32 v130, {fhex(EPS)}, v129'); A('v_rsq_f32 v130, v130')
    A('v_mul_f32 v132, v130, v130'); A('v_mul_f32 v132, v132, v129'); A(f'v_add_f32 v132, {fhex(EPS)}, v132'); A('v_rsq_f32 v132, v132')
    A('v_mov_b32 v129, v128'); A('v_mov_b32 v131, v130')
    A('buffer_load_dwordx4 v[192:195], v158, s[88:91], 0 offen sc1')
    for f in range(4):
        b=160+8*f; t=136+4*(f&1)
        for k in range(4): A(f'v_pk_add_f32 {vr(b+2*k,2)}, {vr(b+2*k,2)}, v[128:129] neg_lo:[0,1] neg_hi:[0,1]')
        for k in range(4): A(f'v_pk_mul_f32 {vr(b+2*k,2)}, {vr(b+2*k,2)}, v[130:131]')
        for k in range(4): A(f'v_cvt_pk_bf16_f32 v{t+k}, v{b+2*k}, v{b+2*k+1}')
        A(f'buffer_store_dwordx4 {vr(t,4)}, v151, s[84:87], s{37+(f>>1)} offen offset:{2048*(f&1)} sc1')
    A('buffer_store_dword v132, v147, s[92:95], 0 offen sc1')
    return o
def ln_publish(L, wearly, touches, lanes_off):
    n=sum(1 for t in wearly if t.startswith('buffer'))+sum(1 for t,g in touches if g)
    o=['s_cmp_eq_u32 s3, 0',f's_cbranch_scc1 {L}_w0']+wearly+[t for t,_ in touches]+[f's_waitcnt vmcnt({n})','s_barrier',f's_branch {L}_b',
       f'{L}_w0:','s_mov_b32 s36, 0x01010101','s_waitcnt vmcnt(0)','s_barrier',
       f'{L}_zc:','v_and_b32 v192, v192, v193','v_and_b32 v194, v194, v195','v_and_b32 v192, v192, v194','v_cmp_ne_u32 vcc, s36, v192','s_nop 1',f's_cbranch_vccz {L}_zo',
       'buffer_load_dwordx4 v[192:195], v158, s[88:91], 0 offen sc1','s_waitcnt vmcnt(0)',f's_branch {L}_zc',f'{L}_zo:',
       's_lshr_b32 s36, s2, 4','s_lshl_b32 s36, s36, 7',f's_add_u32 s36, s36, {FL_L}','v_mov_b32 v152, 0','v_mov_b32 v153, 1',
       's_mov_b64 exec, 1','buffer_atomic_add v153, v152, s[44:47], s36 offen sc1','s_mov_b64 exec, -1']+stamp(3)
    o+=lanes_off+[f's_mov_b32 s36, {FL_L}',f'{L}_p:','buffer_load_dword v153, v152, s[44:47], s36 offen sc1','s_waitcnt vmcnt(0)','v_cmp_ne_u32 vcc, 16, v153','s_nop 1',
       f's_cbranch_vccz {L}_g','s_sleep 2',f's_branch {L}_p',f'{L}_g:']+wearly+[f'{L}_b:','s_barrier']+stamp(6)
    return o

def helper():
    o=['s_sub_u32 s33, s35, 112']+srd(8,52,0,7*MB)+srd(28,4,WS_CS,3584*4)
    o+=['v_cmp_le_u32 vcc, 28, v1','s_nop 1','v_cndmask_b32 v2, 0, 1, vcc','v_mul_u32_u24 v3, 28, v2','v_sub_u32 v3, v1, v3','v_lshlrev_b32 v4, 4, v3',
        'v_mul_u32_u24 v5, 7168, v2','v_add_u32 v4, v4, v5','v_cmp_le_u32 vcc, 56, v1','v_mov_b32 v5, 0x40000000','s_nop 0','v_cndmask_b32 v4, v4, v5, vcc',
        f's_mul_i32 s24, s3, {256*7168}','s_mul_i32 s36, s33, 448','s_add_u32 s24, s24, s36']
    ld=lambda b: sum([[f'buffer_load_dwordx4 {vr(32+64*b+4*e,4)}, v4, s[8:11], s24 offen',f's_add_u32 s24, s24, {2*7168}'] for e in range(16)],[])
    def acc(b,n):
        r=[]
        for e in range(16):
            r.append(f's_waitcnt vmcnt({n+15-e})'); r+=S.unpack8(32+64*b+4*e,16)
            r+=[f'v_pk_add_f32 {vr(8+2*k,2)}, {vr(8+2*k,2)}, {vr(16+2*k,2)}' for k in range(4)]
        return r
    o+=[f'v_mov_b32 v{8+k}, 0' for k in range(8)]+ld(0)+['s_mov_b32 s32, 3','HL_loop:']+ld(1)+acc(0,16)+ld(0)+acc(1,16)
    o+=['s_sub_u32 s32, s32, 1','s_cmp_lg_u32 s32, 0','s_cbranch_scc1 HL_loop']+ld(1)+acc(0,16)+acc(1,0)
    o+=['v_lshlrev_b32 v5, 5, v0','ds_write_b128 v5, v[8:11]','ds_write_b128 v5, v[12:15] offset:16','s_waitcnt lgkmcnt(0)','s_barrier','v_lshlrev_b32 v5, 2, v0']
    for k in range(8): o.append(f'ds_read_b32 v{8+k}, v5 offset:{(k>>1)*2048+(k&1)*896}')
    o+=['s_mul_i32 s36, s33, 896','v_cmp_gt_u32 vcc, 0xe0, v0','v_mov_b32 v6, 0x40000000','s_waitcnt lgkmcnt(0)','v_cndmask_b32 v5, v6, v5, vcc']
    o+=[f'v_add_f32 v8, v8, v{8+k}' for k in range(1,8)]
    o+=['buffer_store_dword v8, v5, s[28:31], s36 offen sc1',f's_mov_b32 s36, {FL_C}']+signal('HL_sig',44,'s36')
    return fix(o)

def m1_kernel(name='m1_kernel', NP1=(3,3), NP2=(6,3), TA=1, TB=1):
    o=kernel_header(name)+['s_cmp_ge_u32 s2, 256','s_cbranch_scc1 M1_end']+stamp(0)+ptrs((80,'x'),(4,'ws'),(82,'dbg'))+lane_setup()+['s_and_b32 s35, s2, 127','s_cmp_ge_u32 s2, 128','s_cbranch_scc1 M1_b']
    o+=ptrs((6,'wq'),(48,'k'),(50,'v'),(52,'wo'),(54,'w4'))+ln_loads('A1_l')+B.a1_ids()+B.a1_srds()
    rest=8*MB-TA*3*MB
    def ta(i):
        return touch(12,70,'s62',1,0,72)+[('s_add_u32 s62, s62, 0x400000',None)] if i in (1,5,9) else []
    GA=B.a1_gemm('A1',bodyx=ta,sc1x=True)
    o+=GA.setup_w()+['v_lshlrev_b32 v70, 7, v0','v_subrev_u32 v71, 8192, v70',f's_mul_i32 s63, s35, 24576',f's_lshl_b32 s62, s35, 15',f's_add_u32 s62, s62, {TA*3*MB}']
    o+=ln_compute()
    tt=touch(12,71,'s63',TA,3*MB,72)
    o+=ln_publish('A1_ln',GA.early('W'),tt,['v_and_b32 v152, 1, v1','v_lshlrev_b32 v152, 7, v152','s_lshl_b32 s36, s33, 8','v_add_u32 v152, s36, v152'])
    GA.vm.q+=[g for _,g in tt if g]
    o+=prof_store(0,8,False)+GA.setup_x()+GA.early('X')
    o+=srd(92,52,0,8*MB)+srd(96,54,0,7*MB)+['s_lshl_b32 s52, s35, 16','s_mul_i32 s53, s35, 57344']
    tch=lambda bb: {1:touch(92,6,'s52',1,0,7)+[('s_add_u32 s52, s52, 0x8000',None)], 4:touch(96,6,'s53',1,0,7)+[('s_add_u32 s53, s53, 0x8000',None)]}.get(bb,[])
    o=fix(o)+GA.main()+['v_lshlrev_b32 v6, 7, v0']+B.a1_rest('A1',GA,tch=tch)+prof_store(4,8)+['s_endpgm','M1_b:']
    p=ptrs((6,'w1'),(48,'w2'),(52,'w3'))+ln_loads('B1_l')+S.tile_ids()+B.b3_ids()
    p+=srd(8,4,WS_XN,4*MB)+srd(12,6,0,2*MB)+srd(16,4,WS_H,4*MB)+srd(20,48,0,2*MB)+srd(28,52,0,7*MB)
    def tb(i):
        if i==15-NP1[1]-1: return touch(28,60,'s62',2,32768,61)
        return []
    g1=S.G128('B1',32,16,NP1,bodyx=tb,sc1x=True,pre=S.b1_pre(92)); g2=S.G128('B2',32,16,NP2,sc1x=True,pre=S.res_pre(20,' sc1'),shift=True); g3=B.b3_gemm('B3',sc1x=True,vDe=240)
    p+=g1.setup_w()+['v_lshlrev_b32 v60, 7, v0','s_mul_i32 s62, s35, 57344','v_subrev_u32 v57, 8192, v60','v_min_u32 v57, 0x3f80, v57','s_lshl_b32 s63, s35, 14']
    p+=ln_compute()
    tt=(touch(12,57,'s63',1,0,61)+touch(20,57,'s63',1,0,61)) if TB else []
    p+=ln_publish('B1_ln',g1.early('W'),tt,['s_lshl_b32 s36, s33, 7','v_mov_b32 v152, s36'])
    g1.vm.q+=[g for _,g in tt if g]
    p+=prof_store(0,8,False)+g1.setup_x()+g1.early('X')
    o+=fix(p)+g1.main()+prof_store(1,8,False)
    p=['s_barrier']+srd(12,48,0,2*MB)+g2.setup_w(False)+g2.early('W')+S.b1_epi(True)+stamp(3)
    p+=['s_lshl_b32 s41, s33, 7',f's_add_u32 s41, s41, {FL_H}']+signal('B1_sig',44,'s41')+stamp(6); g2.vm.q=[]
    p+=g2.setup_x()+srd(8,4,WS_H,4*MB)+srd(16,4,WS_X1,4*MB)+srd(28,4,WS_ST,131072)+srd(20,4,WS_XN,4*MB)
    p+=['v_min_u32 v2, 2, v1','v_add_u32 v2, s33, v2','v_max_u32 v2, 1, v2','v_min_u32 v2, 16, v2','v_lshlrev_b32 v2, 7, v2',f's_mov_b32 s36, {FL_H-128}']
    p+=await_('B2_w',44,2,'s36',8)+stamp(0)
    p+=g2.early('X')
    o+=fix(p)+g2.main(False)+prof_store(2,8,False)
    p=['s_barrier']+srd(12,52,0,7*MB)+g3.setup_w('s51')+['s_cmp_ge_u32 s35, 112','s_cbranch_scc1 M1_now3']+g3.early('W')+['M1_now3:']+S.b2_epi(True)+stamp(3)
    p+=['s_lshl_b32 s41, s33, 7',f's_add_u32 s41, s41, {FL_X}']+signal('B2_sig',44,'s41')+stamp(6); g3.vm.q=[]
    p+=['s_cmp_ge_u32 s35, 112','s_cbranch_scc1 M1_help','s_mov_b32 s33, s50','s_mov_b32 s34, s51']
    p+=g3.setup_x()+srd(8,4,WS_X1,4*MB)+srd(16,4,WS_H3,14*MB)+srd(20,4,WS_ST,131072)+srd(28,4,WS_CS,3584*4)
    p+=['v_and_b32 v2, 1, v1','v_lshlrev_b32 v2, 7, v2','s_lshl_b32 s36, s33, 8',f's_add_u32 s36, s36, {FL_X}']+await_('B3_w',44,2,'s36',8)+stamp(0)
    p+=g3.early('X')
    o+=fix(p)+g3.main()+fix(B.b3_epi('B3'))+prof_store(3,8)+['s_endpgm']+B.b3_cswait('B3')+['M1_help:']+stamp(0)+helper()+prof_store(6,8)+['M1_end:','s_endpgm']
    return o, kernel_desc(name,512,256,102), (256,256,163840)
```
